```python
import torch

def _softmax(x, axis=-1):
    return torch.softmax(x, dim=axis)

def _gelu(x):
    return torch.nn.functional.gelu(x, approximate='tanh')

def _silu(x):
    return torch.nn.functional.silu(x)

def _sigmoid(x):
    return torch.sigmoid(x)

def _layernorm(x, axis=-1, eps=1e-05):
    m = x.mean(dim=axis, keepdim=True)
    v = x.var(dim=axis, keepdim=True, unbiased=False)
    return (x - m) / torch.sqrt(v + eps)

def _scatter_add(tgt, idx, src, axis=0):
    return tgt.clone().index_add_(axis, idx, src)

def _segment_sum(src, seg, n):
    out = torch.zeros((n,) + src.shape[1:], dtype=src.dtype)
    return out.index_add_(0, seg, src)

def _pad(x, pw):
    flat = tuple((v for pair in reversed(pw) for v in pair))
    return torch.nn.functional.pad(x, flat)
kernel_name = 'adaLN_cond__gqa_block_cached__swiglu_ffn__prompt'

def setup_inputs():

    _w = lambda a: (lambda t: t.to(torch.bfloat16) if t.is_floating_point() else t)(torch.as_tensor(a))

    def _A_setup():
        B, Sq, D = (1, 2048, 1024)
        Hq, Hkv, Sk, Dh = (32, 4, 2048, 128)
        assert Hq % Hkv == 0, (Hq, Hkv)
        return {'x': _w((lambda *s: torch.randn(*s, dtype=torch.bfloat16) * 0.05)(B, Sq, D)), 'k_cache': _w((lambda *s: torch.randn(*s, dtype=torch.bfloat16) * 3.2)(B, Hkv, Sk, Dh)), 'v_cache': _w((lambda *s: torch.randn(*s, dtype=torch.bfloat16) * 0.4)(B, Hkv, Sk, Dh)), 'wq': _w((lambda *s: torch.randn(*s, dtype=torch.bfloat16) * 3.2)(D, Hq * Dh) * D ** (-0.5)), 'wo': _w((lambda *s: torch.randn(*s, dtype=torch.bfloat16) * 0.4)(Hq * Dh, D) * (Hq * Dh) ** (-0.5))}
    _A_in = _A_setup()

    def _B_setup():
        B, S, D, F = (1, 2048, 1024, 3584)
        return {'x': _w((lambda *s: torch.randn(*s, dtype=torch.bfloat16) * 0.05)(B, S, D)), 'w_gate': _w((lambda *s: torch.randn(*s, dtype=torch.bfloat16) * 0.05)(D, F)), 'w_up': _w((lambda *s: torch.randn(*s, dtype=torch.bfloat16) * 0.05)(D, F)), 'w_down': _w((lambda *s: torch.randn(*s, dtype=torch.bfloat16) * 0.05)(F, D))}
    _B_in = _B_setup()
    return {'A_x': _A_in['x'], 'A_k_cache': _A_in['k_cache'], 'A_v_cache': _A_in['v_cache'], 'A_wq': _A_in['wq'], 'A_wo': _A_in['wo'], 'B_x': _B_in['x'], 'B_w_gate': _B_in['w_gate'], 'B_w_up': _B_in['w_up'], 'B_w_down': _B_in['w_down'], 'c': _w((lambda *s: torch.randn(*s, dtype=torch.bfloat16) * 0.1)(1, 1024) * 8.0), 'w_mod': _w((lambda *s: torch.randn(*s, dtype=torch.bfloat16) * 0.1)(1024, 6 * 1024) * 1024 ** (-0.5) * 8.0)}

def reference(A_x, A_k_cache, A_v_cache, A_wq, A_wo, B_x, B_w_gate, B_w_up, B_w_down, c, w_mod):

    def _A_ref(x, k_cache, v_cache, wq, wo):
        B, Sq, D = x.shape
        Hq, Dh = (32, 128)
        Hkv = k_cache.shape[1]
        rep = Hq // Hkv
        q = (lambda x, *d: x.permute(*d))((x @ wq).reshape(B, Sq, Hq, Dh), 0, 2, 1, 3)
        k = (lambda x, n, axis: torch.repeat_interleave(x, n, dim=axis))(k_cache, rep, axis=1)
        v = (lambda x, n, axis: torch.repeat_interleave(x, n, dim=axis))(v_cache, rep, axis=1)
        scores = torch.einsum('bhqd,bhkd->bhqk', q, k) * Dh ** (-0.5)
        p = _softmax(scores, axis=-1)
        o = torch.einsum('bhqk,bhkd->bhqd', p, v)
        return (lambda x, *d: x.permute(*d))(o, 0, 2, 1, 3).reshape(B, Sq, Hq * Dh) @ wo

    def _B_ref(x, w_gate, w_up, w_down):
        g = _silu(x @ w_gate)
        u = x @ w_up
        return g * u @ w_down
    x = A_x
    mod = (_silu(c) @ w_mod).reshape(c.shape[0], 6, 1, -1)
    sa, ca, ga, sb, cb, gb = (mod[:, 0].clone(), mod[:, 1].clone(), mod[:, 2].clone(), mod[:, 3].clone(), mod[:, 4].clone(), mod[:, 5].clone())
    h = _layernorm(x, axis=-1) * (1 + ca) + sa
    x = x + ga * _A_ref(h, A_k_cache, A_v_cache, A_wq, A_wo)
    h = _layernorm(x, axis=-1) * (1 + cb) + sb
    x = x + gb * _B_ref(h, B_w_gate, B_w_up, B_w_down)
    return x
```

```python
import re

TRANS = ("v_exp_f32", "v_log_f32", "v_rcp_f32", "v_rsq_f32", "v_sqrt_f32", "v_sin_f32", "v_cos_f32")


def _regs(tok):
    tok = tok.strip()
    neg = tok.startswith("-")
    if neg:
        tok = tok[1:]
    if tok.startswith("abs(") and tok.endswith(")"):
        tok = tok[4:-1]
    if tok.startswith("|") and tok.endswith("|"):
        tok = tok[1:-1]
    m = re.fullmatch(r"([vsa])\[(\d+):(\d+)\]", tok)
    if m:
        return [(m.group(1), i) for i in range(int(m.group(2)), int(m.group(3)) + 1)]
    m = re.fullmatch(r"([vsa])(\d+)", tok)
    if m:
        return [(m.group(1), int(m.group(2)))]
    if tok in ("vcc", "exec", "m0", "scc"):
        return [(tok, 0)]
    if tok in ("vcc_lo", "vcc_hi"):
        return [("vcc", 0)]
    return []


class Ins:
    __slots__ = ("text", "kind", "reads", "writes", "op", "passes", "srcc", "cond", "nstates", "wide", "srcab")

    def __init__(self, text, cond=False):
        self.text = text
        self.cond = cond
        self.reads = set()
        self.writes = set()
        self.passes = 0
        self.srcc = None
        self.srcab = None
        self.nstates = 1
        self.wide = False
        body = text.split(";")[0].strip()
        parts = body.split(None, 1)
        op = parts[0]
        self.op = op
        rest = parts[1] if len(parts) > 1 else ""
        ops = []
        depth = 0
        cur = ""
        for ch in rest:
            if ch == "[":
                depth += 1
            if ch == "]":
                depth -= 1
            if ch == "," and depth == 0:
                ops.append(cur.strip())
                cur = ""
            else:
                cur += ch
        if cur.strip():
            ops.append(cur.strip())
        mods = []
        if ops:
            l = ops[-1].split()
            ops[-1] = l[0]
            mods = l[1:]
        R = lambda i: _regs(ops[i]) if i < len(ops) else []
        if op.startswith("v_mfma"):
            self.kind = "mfma"
            self.passes = 8 if "32x32" in op else 4
            self.writes |= set(R(0))
            self.srcab = set(R(1)) | set(R(2))
            self.srcc = R(3)
            self.reads |= self.srcab | set(self.srcc)
        elif op.startswith("v_"):
            self.kind = "valu"
            if op.startswith("v_cmp"):
                self.writes |= set(R(0))
                for i in range(1, len(ops)):
                    self.reads |= set(R(i))
            elif op.startswith("v_permlane") and "swap" in op:
                self.kind = "permlane"
                self.writes |= set(R(0)) | set(R(1))
                self.reads |= set(R(0)) | set(R(1))
            elif op.startswith("v_readfirstlane") or op.startswith("v_readlane"):
                self.kind = "readlane"
                self.writes |= set(R(0))
                for i in range(1, len(ops)):
                    self.reads |= set(R(i))
            elif op in ("v_add_co_u32", "v_addc_co_u32", "v_sub_co_u32"):
                self.writes |= set(R(0)) | set(R(1))
                for i in range(2, len(ops)):
                    self.reads |= set(R(i))
            else:
                self.writes |= set(R(0))
                for i in range(1, len(ops)):
                    self.reads |= set(R(i))
                if op.startswith("v_fmac") or op.startswith("v_pk_fmac"):
                    self.reads |= set(R(0))
                if op.startswith("v_cndmask") and len(ops) == 3:
                    self.reads.add(("vcc", 0))
                if any(op.startswith(t) for t in TRANS):
                    self.kind = "trans"
                if "_dpp" in op or any(m.startswith(("quad_perm", "row_")) for m in mods):
                    self.kind = "dpp"
        elif op.startswith("ds_read") or op.startswith("ds_swizzle") or op.startswith("ds_bpermute") or op.startswith("ds_permute"):
            self.kind = "ds_read"
            self.writes |= set(R(0))
            for i in range(1, len(ops)):
                self.reads |= set(R(i))
        elif op.startswith("ds_write") or op.startswith("ds_add"):
            self.kind = "ds_write"
            for i in range(len(ops)):
                self.reads |= set(R(i))
        elif op.startswith("buffer_load"):
            if "lds" in mods:
                self.kind = "vmem_lds"
                for i in range(len(ops)):
                    self.reads |= set(R(i))
                self.reads.add(("m0", 0))
            else:
                self.kind = "vmem_load"
                self.writes |= set(R(0))
                for i in range(1, len(ops)):
                    self.reads |= set(R(i))
        elif op.startswith("buffer_store") or op.startswith("buffer_atomic"):
            self.kind = "vmem_store"
            for i in range(len(ops)):
                self.reads |= set(R(i))
            self.wide = op.endswith("x4") or op.endswith("x3")
            if self.wide:
                self.srcc = R(0)
        elif op.startswith("s_load") or op.startswith("s_mem"):
            self.kind = "smem"
            self.writes |= set(R(0))
            self.reads |= set(R(1))
        elif op == "s_nop":
            self.kind = "other"
            self.nstates = int(ops[0], 0) + 1
        elif op in ("s_waitcnt", "s_barrier", "s_endpgm", "s_setprio", "s_sleep") or op.startswith("s_cbranch") or op == "s_branch":
            self.kind = "other"
            if op.startswith("s_cbranch_vcc"):
                self.reads.add(("vcc", 0))
        elif op.startswith("s_"):
            self.kind = "salu"
            if op.startswith("s_cmp"):
                for i in range(len(ops)):
                    self.reads |= set(R(i))
            else:
                self.writes |= set(R(0))
                for i in range(1, len(ops)):
                    self.reads |= set(R(i))
                if "saveexec" in op:
                    self.writes.add(("exec", 0))
        else:
            raise ValueError("unknown instruction: " + text)


VALU_KINDS = ("valu", "trans", "permlane", "readlane", "dpp")


def need_states(p, c):
    n = 0
    pk, ck = p.kind, c.kind
    if pk in VALU_KINDS:
        wv = {r for r in p.writes if r[0] in ("v", "a")}
        ws = {r for r in p.writes if r[0] in ("s", "vcc")}
        if wv:
            if ck == "mfma" and (wv & c.reads):
                n = max(n, 2)
            if ck in ("permlane", "dpp") and (wv & c.reads):
                n = max(n, 2)
            if ck == "readlane" and (wv & c.reads):
                n = max(n, 1)
            if pk == "trans" and ck in VALU_KINDS and (wv & c.reads):
                n = max(n, 1)
        if ws:
            if ck in VALU_KINDS and (ws & c.reads):
                n = max(n, 4 if ck == "readlane" else 2)
            if ck.startswith("vmem") and (ws & c.reads):
                n = max(n, 5)
    if pk == "mfma":
        big = p.passes == 8
        if ck == "mfma":
            if p.writes & c.srcab:
                n = max(n, 12 if big else 8)
            cs = set(c.srcc)
            if p.writes & cs:
                if cs == p.writes and c.passes == p.passes:
                    pass
                else:
                    n = max(n, 10 if big else 6)
            elif p.writes & c.writes:
                n = max(n, 10 if big else 6)
        else:
            if p.writes & (c.reads | c.writes):
                n = max(n, 12 if big else 8)
            if ck in VALU_KINDS and (set(p.srcc) & c.writes):
                n = max(n, 7 if big else 3)
    if pk == "salu" and ("m0", 0) in p.writes and ck == "vmem_lds":
        n = max(n, 1)
    if pk == "vmem_store" and p.wide and (set(p.srcc) & c.writes):
        n = max(n, 2)
    return n


class Asm:
    def __init__(self):
        self.items = []
        self._cond = False

    def __call__(self, text):
        for ln in text.strip().split("\n"):
            ln = ln.strip()
            if not ln or ln.startswith(";"):
                continue
            self.items.append(Ins(ln, self._cond))

    def raw(self, text):
        self.items.append(("raw", text))

    def label(self, name):
        self.items.append(("raw", name + ":"))

    def loop_begin(self, name):
        self.items.append(("loop", name))

    def loop_end(self, branch_text):
        self.items.append(Ins(branch_text))
        self.items.append(("endloop", None))

    def cond(self, flag):
        self._cond = flag

    def _process(self, seq, hist, vmq, lgq):
        out = []
        for ins in seq:
            if not isinstance(ins, Ins):
                out.append(ins)
                continue
            if getattr(ins, "text", "").startswith("s_nop") and ins.text.endswith(";auto"):
                continue
            if ins.text.startswith("s_waitcnt") and ins.text.endswith(";auto"):
                continue
            touched = ins.reads | ins.writes
            vm_need = None
            for qi, regs in enumerate(vmq):
                if regs and (regs & touched):
                    vm_need = len(vmq) - 1 - qi
            lg_need = None
            for qi, regs in enumerate(lgq):
                if regs and (regs & touched):
                    lg_need = len(lgq) - 1 - qi
            if any(q is None for q in lgq) and lg_need is not None:
                lg_need = 0
            if vm_need is not None or lg_need is not None:
                t = "s_waitcnt"
                if vm_need is not None:
                    vm_need = min(vm_need, 63)
                    t += " vmcnt(%d)" % vm_need
                    del vmq[: len(vmq) - vm_need]
                if lg_need is not None:
                    lg_need = min(lg_need, 15)
                    t += " lgkmcnt(%d)" % lg_need
                    del lgq[: len(lgq) - lg_need]
                w = Ins(t + " ;auto")
                out.append(w)
                hist.append(w)
            if ins.op == "s_waitcnt":
                m = re.search(r"vmcnt\((\d+)\)", ins.text)
                if m:
                    k = int(m.group(1))
                    if len(vmq) > k:
                        del vmq[: len(vmq) - k]
                m = re.search(r"lgkmcnt\((\d+)\)", ins.text)
                if m:
                    k = int(m.group(1))
                    if len(lgq) > k:
                        del lgq[: len(lgq) - k]
            dist = 0
            need = 0
            for p in reversed(hist[-40:]):
                if dist >= 20:
                    break
                n = need_states(p, ins)
                if n > dist:
                    need = max(need, n - dist)
                if (not p.cond) or ins.cond:
                    dist += p.nstates
            while need > 0:
                k = min(need, 16)
                w = Ins("s_nop %d ;auto" % (k - 1))
                w.cond = ins.cond
                out.append(w)
                hist.append(w)
                need -= k
            out.append(ins)
            hist.append(ins)
            if ins.kind in ("vmem_load",):
                vmq.append(set(ins.writes))
            elif ins.kind in ("vmem_store", "vmem_lds"):
                vmq.append(set())
            elif ins.kind == "ds_read":
                lgq.append(set(ins.writes))
            elif ins.kind == "ds_write":
                lgq.append(set())
            elif ins.kind == "smem":
                lgq.append(set(ins.writes))
                lgq.append(None)
        return out

    def finalize(self):
        segs = []
        cur = []
        for it in self.items:
            if isinstance(it, tuple) and it[0] == "loop":
                segs.append(("s", cur))
                cur = [("raw", it[1] + ":")]
            elif isinstance(it, tuple) and it[0] == "endloop":
                segs.append(("l", cur))
                cur = []
            else:
                cur.append(it)
        segs.append(("s", cur))
        hist, vmq, lgq = [], [], []
        res = []
        for kind, seq in segs:
            if kind == "s":
                res += self._process(seq, hist, vmq, lgq)
            else:
                h0, v0, l0 = list(hist), [x if x is None else set(x) for x in vmq], [x if x is None else set(x) for x in lgq]
                body = self._process(seq, hist, vmq, lgq)
                for _ in range(4):
                    body_fixed = self._fix(body)
                    h1, v1, l1 = list(hist), [x if x is None else set(x) for x in vmq], [x if x is None else set(x) for x in lgq]
                    body2 = self._process(body_fixed, h1, v1, l1)
                    if [getattr(i, "text", i) for i in body2] == [getattr(i, "text", i) for i in body_fixed]:
                        hist, vmq, lgq = h1, v1, l1
                        body = body_fixed
                        break
                    body = body2
                    hist, vmq, lgq = h1, v1, l1
                else:
                    raise RuntimeError("loop did not converge")
                res += body
        lines = []
        for it in res:
            if isinstance(it, Ins):
                lines.append("    " + it.text.replace(" ;auto", "").replace(" ;fixed", ""))
            else:
                lines.append(it[1])
        return "\n".join(lines) + "\n"

    @staticmethod
    def _fix(body):
        out = []
        for it in body:
            if isinstance(it, Ins) and it.text.endswith(";auto"):
                n = Ins(it.text.replace(";auto", ";fixed"))
                n.cond = it.cond
                out.append(n)
            else:
                out.append(it)
        return out
```

```python
from common import *
import math, struct


def f2u(f):
    return struct.unpack("<I", struct.pack("<f", f))[0]


def gen_attn(name="attn_kernel", RING=6, DIST=4):
    a = Asm()
    nv = [1]

    def alloc(n, al=1):
        nv[0] = (nv[0] + al - 1) // al * al
        r = nv[0]
        nv[0] += n
        return r

    vLane = alloc(1)
    vT = [alloc(1) for _ in range(8)]
    vKA = [alloc(1) for _ in range(8)]
    vVA = [alloc(1) for _ in range(4)]
    vDK = [alloc(1) for _ in range(2)]
    vDV = alloc(1)
    vM, vL, vMc, vOut = alloc(1), alloc(1), alloc(1), alloc(1)
    vQ = [alloc(4, 4) for _ in range(8)]
    vP = [[alloc(4, 4) for _ in range(2)] for _ in range(2)]
    vF = [alloc(4, 4) for _ in range(RING)]
    vS = [[alloc(16, 4) for _ in range(2)] for _ in range(2)]
    vO = [alloc(16, 4) for _ in range(4)]
    NV = nv[0]
    assert NV <= 256, NV

    sQ, sK, sV, sOo = 12, 16, 20, 24
    sW, sKoff, sVoff, sCnt, sMK, sMV, sC, sThr = 28, 29, 30, 31, 32, 33, 34, 35
    sT = [36, 37, 38, 39, 40, 41]
    cexp = (128 ** -0.5) * math.log2(math.e)

    a("s_cmp_ge_u32 s2, 256")
    a("s_cbranch_scc1 %s_end" % name)
    load_ptr(a, 4, "ws")
    load_ptr(a, 6, "k")
    load_ptr(a, 8, "v")
    a("v_and_b32 v%d, 63, v0" % vLane)
    a("v_lshrrev_b32 v%d, 6, v0" % vT[0])
    a("v_readfirstlane_b32 s%d, v%d" % (sW, vT[0]))
    a("s_and_b32 s%d, s2, 7" % sT[0])
    a("s_lshr_b32 s%d, s2, 3" % sT[1])
    a("s_lshr_b32 s%d, s%d, 1" % (sT[2], sT[0]))
    a("s_and_b32 s%d, s%d, 1" % (sT[3], sT[0]))
    a("s_lshl_b32 s%d, s%d, 5" % (sT[3], sT[3]))
    a("s_add_u32 s%d, s%d, s%d" % (sT[3], sT[3], sT[1]))
    a("s_lshr_b32 s%d, s%d, 3" % (sT[4], sT[3]))
    a("s_lshl_b32 s%d, s%d, 3" % (sT[5], sT[2]))
    a("s_add_u32 s%d, s%d, s%d" % (sT[4], sT[4], sT[5]))
    a("s_and_b32 s%d, s%d, 7" % (sT[3], sT[3]))
    a("s_lshl_b32 s%d, s%d, 19" % (sKoff, sT[2]))
    a("s_mov_b32 s%d, s%d" % (sVoff, sKoff))
    a("s_mov_b32 s%d, 0x%x" % (sC, f2u(cexp)))
    a("s_mov_b32 s%d, 0x%x" % (sThr, f2u(8.0 / cexp)))
    a("s_waitcnt lgkmcnt(0)")
    make_srd(a, sQ, 4, SZ_Q, WS_Q)
    make_srd(a, sOo, 4, SZ_Q, WS_O)
    make_srd(a, sK, 6, 4 * 2048 * 128 * 2)
    make_srd(a, sV, 8, 4 * 2048 * 128 * 2)
    a("s_lshl_b32 s%d, s%d, 8" % (sT[3], sT[3]))
    a("s_lshl_b32 s%d, s%d, 5" % (sT[5], sW))
    a("s_add_u32 s%d, s%d, s%d" % (sT[3], sT[3], sT[5]))
    a("s_lshl_b32 s%d, s%d, 8" % (sT[4], sT[4]))
    a("v_and_b32 v%d, 31, v%d" % (vT[0], vLane))
    a("v_add_u32 v%d, s%d, v%d" % (vT[1], sT[3], vT[0]))
    a("v_lshlrev_b32 v%d, 13, v%d" % (vT[1], vT[1]))
    a("v_add_u32 v%d, s%d, v%d" % (vT[1], sT[4], vT[1]))
    a("v_lshrrev_b32 v%d, 5, v%d" % (vT[2], vLane))
    a("v_lshl_add_u32 v%d, v%d, 4, v%d" % (vOut, vT[2], vT[1]))
    for s in range(8):
        a("buffer_load_dwordx4 v[%d:%d], v%d, s[%d:%d], 0 offen offset:%d" % (vQ[s], vQ[s] + 3, vOut, sQ, sQ + 3, s * 32))
    a("v_lshrrev_b32 v%d, 4, v%d" % (vT[3], vLane))
    a("s_lshl_b32 s%d, s%d, 3" % (sT[0], sW))
    a("v_add_u32 v%d, s%d, v%d" % (vT[3], sT[0], vT[3]))
    a("v_and_b32 v%d, 15, v%d" % (vT[4], vLane))
    for t in range(2):
        a("v_add_u32 v%d, %d, v%d" % (vT[5], 4 * t, vT[3]))
        a("v_and_b32 v%d, 15, v%d" % (vT[6], vT[5]))
        a("v_xor_b32 v%d, v%d, v%d" % (vT[6], vT[6], vT[4]))
        a("v_lshlrev_b32 v%d, 8, v%d" % (vT[5], vT[3]))
        a("v_lshl_add_u32 v%d, v%d, 4, v%d" % (vDK[t], vT[6], vT[5]))
    a("v_and_b32 v%d, 3, v%d" % (vT[6], vT[3]))
    a("v_lshlrev_b32 v%d, 2, v%d" % (vT[6], vT[6]))
    a("v_xor_b32 v%d, v%d, v%d" % (vT[6], vT[6], vT[4]))
    a("v_lshlrev_b32 v%d, 8, v%d" % (vT[5], vT[3]))
    a("v_lshl_add_u32 v%d, v%d, 4, v%d" % (vDV, vT[6], vT[5]))
    a("s_lshl_b32 s%d, s%d, 11" % (sMK, sW))
    a("s_add_u32 s%d, s%d, 65536" % (sMV, sMK))

    def dma_k(slot):
        return ["s_add_u32 m0, s%d, %d" % (sMK, slot * 16384),
                "buffer_load_dwordx4 v%d, s[%d:%d], s%d offen lds" % (vDK[0], sK, sK + 3, sKoff),
                "buffer_load_dwordx4 v%d, s[%d:%d], s%d offen offset:1024 lds" % (vDK[1], sK, sK + 3, sKoff),
                "s_add_u32 s%d, s%d, 16384" % (sKoff, sKoff)]

    def dma_v(slot):
        return ["s_add_u32 m0, s%d, %d" % (sMV, slot * 16384),
                "buffer_load_dwordx4 v%d, s[%d:%d], s%d offen lds" % (vDV, sV, sV + 3, sVoff),
                "buffer_load_dwordx4 v%d, s[%d:%d], s%d offen offset:1024 lds" % (vDV, sV, sV + 3, sVoff),
                "s_add_u32 s%d, s%d, 16384" % (sVoff, sVoff)]

    for o in dma_k(0):
        a(o)
    for g in range(3):
        for o in dma_k(g + 1) + dma_v(g):
            a(o)
    a("v_and_b32 v%d, 15, v%d" % (vT[4], vLane))
    a("v_xor_b32 v%d, v%d, v%d" % (vT[4], vT[4], vT[2]))
    a("v_lshlrev_b32 v%d, 4, v%d" % (vT[4], vT[4]))
    a("v_lshl_add_u32 v%d, v%d, 8, v%d" % (vT[4], vT[0], vT[4]))
    for s in range(8):
        a("v_xor_b32 v%d, %d, v%d" % (vKA[s], s << 5, vT[4]))
    a("v_bfe_u32 v%d, v%d, 2, 2" % (vT[3], vLane))
    a("v_and_b32 v%d, 3, v%d" % (vT[4], vLane))
    a("v_bfe_u32 v%d, v%d, 4, 1" % (vT[5], vLane))
    a("v_lshl_add_u32 v%d, v%d, 2, v%d" % (vT[6], vT[2], vT[3]))
    a("v_lshlrev_b32 v%d, 8, v%d" % (vT[6], vT[6]))
    a("v_and_b32 v%d, 1, v%d" % (vT[7], vT[4]))
    a("v_lshl_add_u32 v%d, v%d, 3, v%d" % (vT[6], vT[7], vT[6]))
    a("v_add_u32 v%d, 0x10000, v%d" % (vT[6], vT[6]))
    a("v_lshrrev_b32 v%d, 1, v%d" % (vT[4], vT[4]))
    a("v_lshl_add_u32 v%d, v%d, 1, v%d" % (vT[4], vT[5], vT[4]))
    for db in range(4):
        a("v_xor_b32 v%d, %d, v%d" % (vT[5], db, vT[3]))
        a("v_lshl_add_u32 v%d, v%d, 2, v%d" % (vT[5], vT[5], vT[4]))
        a("v_lshl_add_u32 v%d, v%d, 4, v%d" % (vVA[db], vT[5], vT[6]))
    for db in range(4):
        for r in range(16):
            a("v_mov_b32 v%d, 0" % (vO[db] + r))
    a("v_mov_b32 v%d, 0xf149f2ca" % vM)
    a("v_mov_b32 v%d, 0" % vL)
    a("v_mov_b32 v%d, 0" % vMc)

    def k_read(slot, kb, s, f):
        return ["ds_read_b128 v[%d:%d], v%d offset:%d" % (vF[f], vF[f] + 3, vKA[s], slot * 16384 + kb * 8192)]

    def v_read(slot, kb, j, db, f):
        off = slot * 16384 + kb * 8192 + j * 4096
        return ["ds_read_b64_tr_b16 v[%d:%d], v%d offset:%d" % (vF[f], vF[f] + 1, vVA[db], off),
                "ds_read_b64_tr_b16 v[%d:%d], v%d offset:%d" % (vF[f] + 2, vF[f] + 3, vVA[db], off + 2048)]

    def qk_mfma(sb, kb, s, f):
        d = vS[sb][kb]
        c = "0" if s == 0 else "v[%d:%d]" % (d, d + 15)
        return "v_mfma_f32_32x32x16_bf16 v[%d:%d], v[%d:%d], v[%d:%d], %s" % (d, d + 15, vF[f], vF[f] + 3, vQ[s], vQ[s] + 3, c)

    def pv_mfma(kb, j, db, f):
        d = vO[db]
        return "v_mfma_f32_32x32x16_bf16 v[%d:%d], v[%d:%d], v[%d:%d], v[%d:%d]" % (
            d, d + 15, vF[f], vF[f] + 3, vP[kb][j], vP[kb][j] + 3, d, d + 15)

    a("s_waitcnt vmcnt(12)")
    a("s_barrier")
    seq = [(kb, s) for kb in range(2) for s in range(8)]
    for n in range(min(DIST, 16)):
        for o in k_read(0, seq[n][0], seq[n][1], n % RING):
            a(o)
    for n, (kb, s) in enumerate(seq):
        a(qk_mfma(0, kb, s, n % RING))
        if n + DIST < 16:
            for o in k_read(0, seq[n + DIST][0], seq[n + DIST][1], (n + DIST) % RING):
                a(o)

    uid = [0]

    def iteration(i):
        sb = i & 1
        S = vS[sb]
        kslot = (i + 1) % 4
        vslot = i % 4
        a("s_waitcnt vmcnt(8)")
        a("s_barrier")
        mf = []
        for kb in range(2):
            for s in range(8):
                mf.append(("k", kb, s))
        for kb in range(2):
            for j in range(2):
                for db in range(4):
                    mf.append(("v", kb, j, db))

        def rd(n):
            e = mf[n]
            if e[0] == "k":
                return k_read(kslot, e[1], e[2], n % RING)
            return v_read(vslot, e[1], e[2], e[3], n % RING)

        def mm(n):
            e = mf[n]
            if e[0] == "k":
                return qk_mfma(sb ^ 1, e[1], e[2], n % RING)
            return pv_mfma(e[1], e[2], e[3], n % RING)

        va = []
        t0, t1 = vT[0], vT[1]
        allS = [S[0] + r for r in range(16)] + [S[1] + r for r in range(16)]
        va.append("v_max3_f32 v%d, v%d, v%d, v%d" % (t0, allS[0], allS[1], allS[2]))
        va.append("v_max3_f32 v%d, v%d, v%d, v%d" % (t1, allS[3], allS[4], allS[5]))
        k = 6
        while k < 32:
            if k + 1 < 32:
                va.append("v_max3_f32 v%d, v%d, v%d, v%d" % (t0, t0, allS[k], allS[k + 1]))
                if k + 3 < 32:
                    va.append("v_max3_f32 v%d, v%d, v%d, v%d" % (t1, t1, allS[k + 2], allS[k + 3]))
                k += 4
        va.append("v_max_f32 v%d, v%d, v%d" % (t0, t0, t1))
        va.append("v_mov_b32 v%d, v%d" % (t1, t0))
        va.append("v_permlane32_swap_b32 v%d, v%d" % (t0, t1))
        va.append("v_max_f32 v%d, v%d, v%d" % (t0, t0, t1))
        va.append("v_sub_f32 v%d, v%d, v%d" % (t1, t0, vM))
        va.append("v_cmp_lt_f32 vcc, s%d, v%d" % (sThr, t1))

        def rescale():
            uid[0] += 1
            lab = "%s_nors%d" % (name, uid[0])
            a("s_cbranch_vccz %s" % lab)
            a.cond(True)
            a("v_max_f32 v%d, v%d, v%d" % (t0, t0, vM))
            a("v_sub_f32 v%d, v%d, v%d" % (t1, vM, t0))
            a("v_mul_f32 v%d, s%d, v%d" % (t1, sC, t1))
            a("v_exp_f32 v%d, v%d" % (t1, t1))
            a("v_mov_b32 v%d, v%d" % (vM, t0))
            a("v_mul_f32 v%d, s%d, v%d" % (vMc, sC, t0))
            a("v_mul_f32 v%d, v%d, v%d" % (vL, vL, t1))
            for db in range(4):
                for r in range(16):
                    a("v_mul_f32 v%d, v%d, v%d" % (vO[db] + r, vO[db] + r, t1))
            a.cond(False)
            a.label(lab)

        va.append(rescale)
        for kb in range(2):
            for j in range(2):
                regs = [S[kb] + 8 * j + e for e in range(8)]
                for r in regs:
                    va.append("v_fma_f32 v%d, v%d, s%d, -v%d" % (r, r, sC, vMc))
                    va.append("v_exp_f32 v%d, v%d" % (r, r))
                for e in range(0, 8, 2):
                    va.append("v_add_f32 v%d, v%d, v%d" % (vT[2 + (e >> 1)], regs[e], regs[e + 1]))
                    va.append("v_cvt_pk_bf16_f32 v%d, v%d, v%d" % (vP[kb][j] + e // 2, regs[e], regs[e + 1]))
                va.append("v_add_f32 v%d, v%d, v%d" % (vT[2], vT[2], vT[3]))
                va.append("v_add_f32 v%d, v%d, v%d" % (vT[4], vT[4], vT[5]))
                va.append("v_add_f32 v%d, v%d, v%d" % (vL, vL, vT[2]))
                va.append("v_add_f32 v%d, v%d, v%d" % (vL, vL, vT[4]))
                va.append(("mark", kb, j))
        dm = dma_k(i % 4) + dma_v((i + 3) % 4)
        for n in range(DIST):
            for o in rd(n):
                a(o)
        for o in dm:
            a(o)
        vi = 0
        done_marks = set()

        def emit_va(cnt):
            nonlocal vi
            c = 0
            while vi < len(va) and c < cnt:
                x = va[vi]
                vi += 1
                if callable(x):
                    x()
                elif isinstance(x, tuple):
                    done_marks.add((x[1], x[2]))
                    continue
                else:
                    a(x)
                c += 1

        emit_va(6)
        for n in range(32):
            e = mf[n]
            if e[0] == "v":
                while (e[1], e[2]) not in done_marks:
                    emit_va(1)
            a(mm(n))
            if n + DIST < 32:
                for o in rd(n + DIST):
                    a(o)
            emit_va(5)
        assert vi == len(va)

    a("s_mov_b32 s%d, 8" % sCnt)
    a.loop_begin("%s_loop" % name)
    for u in range(4):
        iteration(u)
    a("s_sub_u32 s%d, s%d, 1" % (sCnt, sCnt))
    a("s_cmp_lg_u32 s%d, 0" % sCnt)
    a.loop_end("s_cbranch_scc1 %s_loop" % name)

    a("v_mov_b32 v%d, v%d" % (vT[0], vL))
    a("v_permlane32_swap_b32 v%d, v%d" % (vL, vT[0]))
    a("v_add_f32 v%d, v%d, v%d" % (vL, vL, vT[0]))
    a("v_rcp_f32 v%d, v%d" % (vL, vL))
    for db in range(4):
        e = vS[0][0] + 8 * db
        for d in range(8):
            r0, r1 = vO[db] + 2 * d, vO[db] + 2 * d + 1
            a("v_mul_f32 v%d, v%d, v%d" % (r0, r0, vL))
            a("v_mul_f32 v%d, v%d, v%d" % (r1, r1, vL))
            a("v_cvt_pk_bf16_f32 v%d, v%d, v%d" % (e + d, r0, r1))
        for qp in range(2):
            t = e + 4 * qp
            a("v_permlane32_swap_b32 v%d, v%d" % (t, t + 2))
            a("v_permlane32_swap_b32 v%d, v%d" % (t + 1, t + 3))
            a("buffer_store_dwordx4 v[%d:%d], v%d, s[%d:%d], 0 offen offset:%d" % (t, t + 3, vOut, sOo, sOo + 3, db * 64 + qp * 32))
    a.label("%s_end" % name)
    a("s_endpgm")
    launch = "; @launch kernel=%s grid=(256,1,1) block=(512,1,1) lds=131072" % name
    return launch, kernel_header(name) + a.finalize() + kernel_footer(name, NV, 64)
```

```python
from asmlib import Asm

KA = dict(x=0, k=8, v=16, wq=24, wo=32, bx=40, wg=48, wu=56, wd=64, c=72, wmod=80, out=88, dbg=96, ws=104)

WS_MOD = 0x0
WS_H1 = 0x100000
WS_Q = 0x500000
WS_O = 0x1500000
WS_X1 = 0x2500000
WS_H2 = 0x2900000
WS_GU = 0x2D00000
SZ_MOD = 6144 * 4
SZ_ACT = 2048 * 1024 * 2
SZ_Q = 2048 * 4096 * 2
SZ_GU = 2048 * 3584 * 2


def kernel_header(name):
    return (
        ".text\n.globl %s\n.p2align 8\n.type %s,@function\n%s:\n" % (name, name, name)
    )


def kernel_footer(name, vgpr, sgpr=102):
    acc = (vgpr + 3) // 4 * 4
    return (
        '.section .rodata,"a"\n.p2align 6\n.amdhsa_kernel %s\n'
        "  .amdhsa_next_free_vgpr %d\n  .amdhsa_next_free_sgpr %d\n  .amdhsa_accum_offset %d\n"
        "  .amdhsa_group_segment_fixed_size 0\n  .amdhsa_kernarg_size 112\n"
        "  .amdhsa_user_sgpr_count 2\n  .amdhsa_user_sgpr_kernarg_segment_ptr 1\n"
        "  .amdhsa_system_sgpr_workgroup_id_x 1\n.end_amdhsa_kernel\n" % (name, vgpr, sgpr, acc)
    )


def load_ptr(a, sreg, slot):
    a("s_load_dwordx2 s[%d:%d], s[0:1], %d" % (sreg, sreg + 1, KA[slot]))


def make_srd(a, srd, ptr, size, off=0):
    if off:
        a("s_add_u32 s%d, s%d, 0x%x" % (srd, ptr, off))
        a("s_addc_u32 s%d, s%d, 0" % (srd + 1, ptr + 1))
    else:
        a("s_mov_b32 s%d, s%d" % (srd, ptr))
        a("s_mov_b32 s%d, s%d" % (srd + 1, ptr + 1))
    a("s_mov_b32 s%d, 0x%x" % (srd + 2, size))
    a("s_mov_b32 s%d, 0x00020000" % (srd + 3))


def round_pair(a, d0, d1, s0, s1, tmp):
    a("v_cvt_pk_bf16_f32 v%d, v%d, v%d" % (tmp, s0, s1))
    a("v_lshlrev_b32 v%d, 16, v%d" % (d0, tmp))
    a("v_and_b32 v%d, 0xffff0000, v%d" % (d1, tmp))


def wave_reduce(a, v, t, op="v_add_f32"):
    a("%s_dpp v%d, v%d, v%d quad_perm:[1,0,3,2] row_mask:0xf bank_mask:0xf" % (op, t, v, v))
    a("%s_dpp v%d, v%d, v%d quad_perm:[2,3,0,1] row_mask:0xf bank_mask:0xf" % (op, v, t, t))
    a("%s_dpp v%d, v%d, v%d row_half_mirror row_mask:0xf bank_mask:0xf" % (op, t, v, v))
    a("%s_dpp v%d, v%d, v%d row_mirror row_mask:0xf bank_mask:0xf" % (op, v, t, t))
    a("ds_swizzle_b32 v%d, v%d offset:0x401F" % (t, v))
    a("%s v%d, v%d, v%d" % (op, v, v, t))
    a("v_mov_b32 v%d, v%d" % (t, v))
    a("v_permlane32_swap_b32 v%d, v%d" % (v, t))
    a("%s v%d, v%d, v%d" % (op, v, v, t))
```

```python
from common import *


def lg2(x):
    n = x.bit_length() - 1
    assert 1 << n == x, x
    return n


def gen_gemm(name, a_ws, K, bslots, N, BM, PW, BK, NST, WM, WN, epi, out_ws, ldc, GM, GN, xm,
             resid_ws=None, gate_chunk=None):
    NP = len(bslots)
    NW = WM * WN
    TM = BM // WM
    TNp = PW // WN
    IM = TM // 32
    JP = TNp // 32
    J = JP * NP
    NKK = BK // 16
    NS = K // BK
    SA = BM * BK * 2
    SB = BK * PW * 2
    STAGE = SA + NP * SB
    LDS = STAGE * NST
    assert LDS <= 160 * 1024
    nAw = SA // 1024 // NW
    nBw = SB // 1024 // NW
    assert nAw * 1024 * NW == SA and nBw * 1024 * NW == SB and nAw <= 4 and nBw <= 4
    L = nAw + NP * nBw
    CPR = BK // 8
    RPI = 1024 // (BK * 2)
    RPB = 16 // CPR
    CPRb = PW // 8
    RPIb = 1024 // (PW * 2)
    RB = max(1, 128 // PW)
    SPR = PW // 32
    gmask = min(SPR, 4) - 1
    NWG = GM * GN

    a = Asm()
    nv = [1]

    def alloc(n, al=1):
        nv[0] = (nv[0] + al - 1) // al * al
        r = nv[0]
        nv[0] += n
        return r

    vLane = alloc(1)
    vT = [alloc(1) for _ in range(6)]
    vDA = [alloc(1) for _ in range(nAw)]
    vDB = [alloc(1) for _ in range(nBw)]
    vRA = [[alloc(1) for _ in range(NKK)] for _ in range(NST)]
    vRB = [[alloc(1) for _ in range(JP)] for _ in range(NST)]
    vC = alloc(1)
    vX = alloc(1)
    vG = alloc(1)
    fA = [[alloc(4, 4) for _ in range(IM)] for _ in range(2)]
    fB = [[alloc(4, 4) for _ in range(J)] for _ in range(2)]
    vE = alloc(32, 4)
    acc = [[alloc(16, 4) for _ in range(J)] for _ in range(IM)]
    NV = nv[0]
    assert NV <= 256, NV

    sA, sB, sC, sX, sMod = 12, [16, 20], 24, 28, 32
    sM, sN, sW, sKA, sKB, sCnt, sMA = 36, 37, 38, 39, 40, 41, 42
    sMB = [43, 44]
    sT = [45, 46, 47, 48, 49, 50]

    a("s_cmp_ge_u32 s2, %d" % NWG)
    a("s_cbranch_scc1 %s_end" % name)
    load_ptr(a, 4, "ws")
    for p, sl in enumerate(bslots):
        load_ptr(a, 6 + 2 * p, sl)
    load_ptr(a, 10, "x")
    load_ptr(a, 52, "out")
    a("v_and_b32 v%d, 63, v0" % vLane)
    a("v_lshrrev_b32 v%d, 6, v0" % vT[0])
    a("v_readfirstlane_b32 s%d, v%d" % (sW, vT[0]))
    gmx = GM // xm
    gnx = GN // (8 // xm)
    a("s_and_b32 s%d, s2, 7" % sT[0])
    a("s_lshr_b32 s%d, s2, 3" % sT[1])
    a("s_and_b32 s%d, s%d, %d" % (sT[2], sT[0], xm - 1))
    a("s_lshr_b32 s%d, s%d, %d" % (sT[3], sT[0], lg2(xm)))
    a("s_and_b32 s%d, s%d, %d" % (sT[4], sT[1], gmx - 1))
    a("s_lshr_b32 s%d, s%d, %d" % (sT[5], sT[1], lg2(gmx)))
    a("s_mul_i32 s%d, s%d, %d" % (sT[2], sT[2], gmx))
    a("s_add_u32 s%d, s%d, s%d" % (sM, sT[2], sT[4]))
    a("s_mul_i32 s%d, s%d, %d" % (sT[3], sT[3], gnx))
    a("s_add_u32 s%d, s%d, s%d" % (sN, sT[3], sT[5]))
    a("s_mul_i32 s%d, s%d, %d" % (sM, sM, BM))
    a("s_mul_i32 s%d, s%d, %d" % (sN, sN, PW))
    a("s_waitcnt lgkmcnt(0)")
    make_srd(a, sA, 4, 2048 * K * 2, a_ws)
    for p in range(NP):
        make_srd(a, sB[p], 6 + 2 * p, K * N * 2)
    if out_ws is None:
        make_srd(a, sC, 52, 2048 * ldc * 2)
    else:
        make_srd(a, sC, 4, 2048 * ldc * 2, out_ws)
    if epi == "resid":
        if resid_ws is None:
            make_srd(a, sX, 10, SZ_ACT)
        else:
            make_srd(a, sX, 4, SZ_ACT, resid_ws)
        make_srd(a, sMod, 4, SZ_MOD, WS_MOD)

    a("s_mul_i32 s%d, s%d, %d" % (sT[0], sW, nAw * RPI))
    a("s_mov_b32 s%d, %d" % (sT[1], K * 2))
    a("v_lshrrev_b32 v%d, %d, v%d" % (vT[0], lg2(CPR), vLane))
    a("v_add_u32 v%d, s%d, v%d" % (vT[0], sT[0], vT[0]))
    a("v_and_b32 v%d, %d, v%d" % (vT[1], CPR - 1, vLane))
    for t in range(nAw):
        a("v_add_u32 v%d, %d, v%d" % (vT[2], t * RPI, vT[0]))
        a("v_bfe_u32 v%d, v%d, %d, %d" % (vT[3], vT[2], lg2(RPB), lg2(CPR)))
        a("v_xor_b32 v%d, v%d, v%d" % (vT[3], vT[3], vT[1]))
        a("v_add_u32 v%d, s%d, v%d" % (vT[2], sM, vT[2]))
        a("v_mul_lo_u32 v%d, v%d, s%d" % (vT[2], vT[2], sT[1]))
        a("v_lshl_add_u32 v%d, v%d, 4, v%d" % (vDA[t], vT[3], vT[2]))
        if t:
            a("v_subrev_u32 v%d, %d, v%d" % (vDA[t], t * 1024, vDA[t]))
    a("s_mul_i32 s%d, s%d, %d" % (sT[0], sW, nBw * RPIb))
    a("s_mov_b32 s%d, %d" % (sT[1], N * 2))
    a("s_lshl_b32 s%d, s%d, 1" % (sT[2], sN))
    a("v_lshrrev_b32 v%d, %d, v%d" % (vT[0], lg2(CPRb), vLane))
    a("v_add_u32 v%d, s%d, v%d" % (vT[0], sT[0], vT[0]))
    a("v_and_b32 v%d, %d, v%d" % (vT[1], CPRb - 1, vLane))
    for t in range(nBw):
        a("v_add_u32 v%d, %d, v%d" % (vT[2], t * RPIb, vT[0]))
        a("v_lshrrev_b32 v%d, %d, v%d" % (vT[3], lg2(RB), vT[2]))
        a("v_and_b32 v%d, %d, v%d" % (vT[3], gmask, vT[3]))
        a("v_lshlrev_b32 v%d, 2, v%d" % (vT[3], vT[3]))
        a("v_xor_b32 v%d, v%d, v%d" % (vT[3], vT[3], vT[1]))
        a("v_mul_lo_u32 v%d, v%d, s%d" % (vT[2], vT[2], sT[1]))
        a("v_lshl_add_u32 v%d, v%d, 4, v%d" % (vDB[t], vT[3], vT[2]))
        a("v_add_u32 v%d, s%d, v%d" % (vDB[t], sT[2], vDB[t]))
        if t:
            a("v_subrev_u32 v%d, %d, v%d" % (vDB[t], t * 1024, vDB[t]))
    a("s_mul_i32 s%d, s%d, %d" % (sMA, sW, nAw * 1024))
    for p in range(NP):
        a("s_mul_i32 s%d, s%d, %d" % (sMB[p], sW, nBw * 1024))
        a("s_add_u32 s%d, s%d, %d" % (sMB[p], sMB[p], SA + p * SB))
    a("s_mov_b32 s%d, 0" % sKA)
    a("s_mov_b32 s%d, 0" % sKB)

    def dma_ops(slot):
        ops = []
        ops.append("s_add_u32 m0, s%d, %d" % (sMA, slot * STAGE))
        for t in range(nAw):
            ops.append("buffer_load_dwordx4 v%d, s[%d:%d], s%d offen offset:%d lds" % (vDA[t], sA, sA + 3, sKA, t * 1024))
        for p in range(NP):
            ops.append("s_add_u32 m0, s%d, %d" % (sMB[p], slot * STAGE))
            for t in range(nBw):
                ops.append("buffer_load_dwordx4 v%d, s[%d:%d], s%d offen offset:%d lds" % (vDB[t], sB[p], sB[p] + 3, sKB, t * 1024))
        ops.append("s_add_u32 s%d, s%d, %d" % (sKA, sKA, BK * 2))
        ops.append("s_add_u32 s%d, s%d, %d" % (sKB, sKB, BK * N * 2))
        return ops

    for st in range(NST):
        for o in dma_ops(st):
            a(o)

    a("s_lshr_b32 s%d, s%d, %d" % (sT[0], sW, lg2(WN)))
    a("s_and_b32 s%d, s%d, %d" % (sT[1], sW, WN - 1))
    a("s_mul_i32 s%d, s%d, %d" % (sT[2], sT[0], TM))
    a("s_mul_i32 s%d, s%d, %d" % (sT[3], sT[1], TNp))
    a("v_and_b32 v%d, 31, v%d" % (vT[0], vLane))
    a("v_add_u32 v%d, s%d, v%d" % (vT[0], sT[2], vT[0]))
    a("v_lshrrev_b32 v%d, 5, v%d" % (vT[1], vLane))
    a("v_bfe_u32 v%d, v%d, %d, %d" % (vT[2], vT[0], lg2(RPB), lg2(CPR)))
    a("v_xor_b32 v%d, v%d, v%d" % (vT[2], vT[2], vT[1]))
    a("v_lshlrev_b32 v%d, 4, v%d" % (vT[2], vT[2]))
    a("v_lshl_add_u32 v%d, v%d, %d, v%d" % (vT[2], vT[0], lg2(BK * 2), vT[2]))
    for kk in range(NKK):
        a("v_xor_b32 v%d, %d, v%d" % (vRA[0][kk], kk << 5, vT[2]))
        for st in range(1, NST):
            a("v_add_u32 v%d, %d, v%d" % (vRA[st][kk], st * STAGE, vRA[0][kk]))
    a("v_add_u32 v%d, s%d, v%d" % (vT[0], sM, vT[0]))
    a("s_add_u32 s%d, s%d, s%d" % (sT[3], sT[3], sN))
    a("s_lshl_b32 s%d, s%d, 1" % (sT[4], sT[3]))
    a("s_mov_b32 s%d, %d" % (sT[5], ldc * 2))
    a("v_mul_lo_u32 v%d, v%d, s%d" % (vC, vT[0], sT[5]))
    a("v_add_u32 v%d, s%d, v%d" % (vC, sT[4], vC))
    a("v_lshl_add_u32 v%d, v%d, 4, v%d" % (vC, vT[1], vC))
    if epi == "resid":
        a("v_lshlrev_b32 v%d, 11, v%d" % (vX, vT[0]))
        a("v_add_u32 v%d, s%d, v%d" % (vX, sT[4], vX))
        a("v_lshl_add_u32 v%d, v%d, 3, v%d" % (vX, vT[1], vX))
        a("s_lshl_b32 s%d, s%d, 2" % (sT[4], sT[3]))
        a("s_add_u32 s%d, s%d, %d" % (sT[4], sT[4], gate_chunk * 4096))
        a("v_lshlrev_b32 v%d, 4, v%d" % (vG, vT[1]))
        a("v_add_u32 v%d, s%d, v%d" % (vG, sT[4], vG))
    a("s_mul_i32 s%d, s%d, %d" % (sT[3], sT[1], TNp // 8))
    a("v_bfe_u32 v%d, v%d, 2, 2" % (vT[0], vLane))
    a("v_and_b32 v%d, 3, v%d" % (vT[1], vLane))
    a("v_bfe_u32 v%d, v%d, 4, 1" % (vT[2], vLane))
    a("v_lshrrev_b32 v%d, 5, v%d" % (vT[3], vLane))
    a("v_lshl_add_u32 v%d, v%d, 3, v%d" % (vT[3], vT[3], vT[0]))
    a("v_lshlrev_b32 v%d, %d, v%d" % (vT[3], lg2(PW * 2), vT[3]))
    a("v_and_b32 v%d, 1, v%d" % (vT[4], vT[1]))
    a("v_lshl_add_u32 v%d, v%d, 3, v%d" % (vT[3], vT[4], vT[3]))
    a("v_add_u32 v%d, %d, v%d" % (vT[3], SA, vT[3]))
    a("v_lshrrev_b32 v%d, 1, v%d" % (vT[1], vT[1]))
    a("v_lshl_add_u32 v%d, v%d, 1, v%d" % (vT[1], vT[2], vT[1]))
    a("v_add_u32 v%d, s%d, v%d" % (vT[1], sT[3], vT[1]))
    a("v_lshrrev_b32 v%d, %d, v%d" % (vT[0], lg2(RB), vT[0]))
    a("v_and_b32 v%d, %d, v%d" % (vT[0], gmask, vT[0]))
    a("v_lshlrev_b32 v%d, 2, v%d" % (vT[0], vT[0]))
    for j in range(JP):
        a("v_add_u32 v%d, %d, v%d" % (vT[2], j * 4, vT[1]))
        a("v_xor_b32 v%d, v%d, v%d" % (vT[2], vT[2], vT[0]))
        a("v_lshl_add_u32 v%d, v%d, 4, v%d" % (vRB[0][j], vT[2], vT[3]))
        for st in range(1, NST):
            a("v_add_u32 v%d, %d, v%d" % (vRB[st][j], st * STAGE, vRB[0][j]))
    for i in range(IM):
        for j in range(J):
            for r in range(16):
                a("v_mov_b32 v%d, 0" % (acc[i][j] + r))

    def read_ops(slot, kk, buf):
        ops = []
        for i in range(IM):
            ops.append("ds_read_b128 v[%d:%d], v%d offset:%d" % (fA[buf][i], fA[buf][i] + 3, vRA[slot][kk], i * 32 * BK * 2))
        for j in range(J):
            p, jj = j // JP, j % JP
            off = p * SB + kk * 16 * PW * 2
            ops.append("ds_read_b64_tr_b16 v[%d:%d], v%d offset:%d" % (fB[buf][j], fB[buf][j] + 1, vRB[slot][jj], off))
            ops.append("ds_read_b64_tr_b16 v[%d:%d], v%d offset:%d" % (fB[buf][j] + 2, fB[buf][j] + 3, vRB[slot][jj], off + 4 * PW * 2))
        return ops

    def mfma_ops(buf):
        ops = []
        for i in range(IM):
            for j in range(J):
                ops.append("v_mfma_f32_32x32x16_bf16 v[%d:%d], v[%d:%d], v[%d:%d], v[%d:%d]" % (
                    acc[i][j], acc[i][j] + 15, fB[buf][j], fB[buf][j] + 3, fA[buf][i], fA[buf][i] + 3, acc[i][j], acc[i][j] + 15))
        return ops

    def interleave(mf, others):
        n = len(mf)
        per = (len(others) + n - 1) // n if others else 0
        k = 0
        for m in mf:
            a(m)
            for o in others[k:k + per]:
                a(o)
            k += per
        for o in others[k:]:
            a(o)

    a("s_waitcnt vmcnt(%d)" % ((NST - 1) * L))
    a("s_barrier")
    for o in read_ops(0, 0, 0):
        a(o)

    def step(it, in_loop):
        slot = it % NST
        for kk in range(NKK):
            buf = kk & 1
            if kk < NKK - 1:
                interleave(mfma_ops(buf), read_ops(slot, kk + 1, buf ^ 1))
            else:
                last = (not in_loop) and it == NS - 1
                if last:
                    interleave(mfma_ops(buf), [])
                else:
                    if in_loop:
                        remain = (NST - 2) * L
                        do_load = True
                    else:
                        remain = (min(it + NST - 1, NS - 1) - (it + 1)) * L
                        do_load = it + NST < NS
                    a("s_waitcnt vmcnt(%d) lgkmcnt(0)" % remain)
                    a("s_barrier")
                    others = read_ops((it + 1) % NST, 0, buf ^ 1)
                    if do_load:
                        others = others + dma_ops(slot)
                    interleave(mfma_ops(buf), others)

    nload = NS - NST
    Lp = (nload // NST) * NST if nload > 0 else 0
    if Lp:
        a("s_mov_b32 s%d, %d" % (sCnt, Lp // NST))
        a.loop_begin("%s_loop" % name)
        for u in range(NST):
            step(u, True)
        a("s_sub_u32 s%d, s%d, 1" % (sCnt, sCnt))
        a("s_cmp_lg_u32 s%d, 0" % sCnt)
        a.loop_end("s_cbranch_scc1 %s_loop" % name)
    for it in range(Lp, NS):
        step(it, False)

    def store_block(src4, i, j):
        for qp in range(2):
            t = src4 + 4 * qp
            a("v_permlane32_swap_b32 v%d, v%d" % (t, t + 2))
            a("v_permlane32_swap_b32 v%d, v%d" % (t + 1, t + 3))
            a("buffer_store_dwordx4 v[%d:%d], v%d, s[%d:%d], s%d offen offset:%d" % (
                t, t + 3, vC, sC, sC + 3, sT[0] if i else sT[1], j * 64 + qp * 32))

    a("s_mov_b32 s%d, 0" % sT[1])
    assert IM <= 2
    a("s_mov_b32 s%d, %d" % (sT[0], 32 * ldc * 2))
    a("s_mov_b32 s%d, %d" % (sT[2], 32 * 2048))
    if epi == "store":
        n = 0
        for i in range(IM):
            for j in range(J):
                e = vE + 8 * (n % 4)
                n += 1
                for d in range(8):
                    a("v_cvt_pk_bf16_f32 v%d, v%d, v%d" % (e + d, acc[i][j] + 2 * d, acc[i][j] + 2 * d + 1))
                store_block(e, i, j)
    elif epi == "resid":
        gbuf = fA[0][0]
        gregs = fA[0][0]
        assert fB[0][0] == fA[1][IM - 1] + 4
        for j in range(J):
            for q in range(4):
                a("buffer_load_dwordx4 v[%d:%d], v%d, s[%d:%d], 0 offen offset:%d" % (
                    gregs + 4 * q, gregs + 4 * q + 3, vG, sMod, sMod + 3, j * 128 + q * 32))
            for i in range(IM):
                xr = vE + 16
                for q in range(4):
                    a("buffer_load_dwordx2 v[%d:%d], v%d, s[%d:%d], s%d offen offset:%d" % (
                        xr + 2 * q, xr + 2 * q + 1, vX, sX, sX + 3, sT[2] if i else sT[1], j * 64 + q * 16))
                ac = acc[i][j]
                for d in range(8):
                    r0, r1 = ac + 2 * d, ac + 2 * d + 1
                    round_pair(a, r0, r1, r0, r1, vT[0])
                    a("v_mul_f32 v%d, v%d, v%d" % (r0, r0, gregs + 2 * d))
                    a("v_mul_f32 v%d, v%d, v%d" % (r1, r1, gregs + 2 * d + 1))
                    round_pair(a, r0, r1, r0, r1, vT[0])
                    a("v_lshlrev_b32 v%d, 16, v%d" % (vT[1], xr + d))
                    a("v_and_b32 v%d, 0xffff0000, v%d" % (vT[2], xr + d))
                    a("v_add_f32 v%d, v%d, v%d" % (r0, r0, vT[1]))
                    a("v_add_f32 v%d, v%d, v%d" % (r1, r1, vT[2]))
                    a("v_cvt_pk_bf16_f32 v%d, v%d, v%d" % (vE + 8 * (i & 1) + d, r0, r1))
                store_block(vE + 8 * (i & 1), i, j)
    elif epi == "swiglu":
        n = 0
        for i in range(IM):
            for j in range(JP):
                e = vE + 8 * (n % 4)
                n += 1
                g, u = acc[i][j], acc[i][j + JP]
                for d in range(8):
                    g0, g1, u0, u1 = g + 2 * d, g + 2 * d + 1, u + 2 * d, u + 2 * d + 1
                    round_pair(a, g0, g1, g0, g1, vT[0])
                    a("v_mul_f32 v%d, 0xbfb8aa3b, v%d" % (vT[1], g0))
                    a("v_mul_f32 v%d, 0xbfb8aa3b, v%d" % (vT[2], g1))
                    a("v_exp_f32 v%d, v%d" % (vT[1], vT[1]))
                    a("v_exp_f32 v%d, v%d" % (vT[2], vT[2]))
                    round_pair(a, u0, u1, u0, u1, vT[0])
                    a("v_add_f32 v%d, 1.0, v%d" % (vT[1], vT[1]))
                    a("v_add_f32 v%d, 1.0, v%d" % (vT[2], vT[2]))
                    a("v_rcp_f32 v%d, v%d" % (vT[1], vT[1]))
                    a("v_rcp_f32 v%d, v%d" % (vT[2], vT[2]))
                    a("v_mul_f32 v%d, v%d, v%d" % (g0, g0, vT[1]))
                    a("v_mul_f32 v%d, v%d, v%d" % (g1, g1, vT[2]))
                    round_pair(a, g0, g1, g0, g1, vT[0])
                    a("v_mul_f32 v%d, v%d, v%d" % (g0, g0, u0))
                    a("v_mul_f32 v%d, v%d, v%d" % (g1, g1, u1))
                    a("v_cvt_pk_bf16_f32 v%d, v%d, v%d" % (e + d, g0, g1))
                store_block(e, i, j)
    a.label("%s_end" % name)
    a("s_endpgm")
    launch = "; @launch kernel=%s grid=(%d,1,1) block=(%d,1,1) lds=%d" % (name, NWG, NW * 64, LDS)
    return launch, kernel_header(name) + a.finalize() + kernel_footer(name, NV, 64)
```

```python
from common import *


def gen_mod(name="mod_kernel"):
    a = Asm()
    a("s_cmp_ge_u32 s2, 192")
    a("s_cbranch_scc1 %s_end" % name)
    load_ptr(a, 4, "c")
    load_ptr(a, 6, "wmod")
    load_ptr(a, 8, "ws")
    a("v_and_b32 v1, 63, v0")
    a("v_lshrrev_b32 v2, 6, v0")
    a("v_and_b32 v3, 3, v1")
    a("v_lshrrev_b32 v4, 2, v1")
    a("v_lshl_add_u32 v4, v2, 4, v4")
    a("s_waitcnt lgkmcnt(0)")
    make_srd(a, 12, 4, 2048)
    make_srd(a, 16, 6, 1024 * 6144 * 2)
    make_srd(a, 20, 8, SZ_MOD, WS_MOD)
    a("v_lshlrev_b32 v5, 1, v4")
    a("s_mov_b32 s24, 12288")
    a("v_mul_lo_u32 v6, v4, s24")
    a("s_lshl_b32 s25, s2, 6")
    a("v_lshl_add_u32 v6, v3, 4, v6")
    a("v_add_u32 v6, s25, v6")
    for p in range(8):
        a("buffer_load_ushort v%d, v5, s[12:15], 0 offen offset:%d" % (8 + p, p * 256))
    for p in range(8):
        a("s_mov_b32 s%d, %d" % (26 + p, p * 128 * 12288))
    for p in range(8):
        a("buffer_load_dwordx4 v[%d:%d], v6, s[16:19], s%d offen" % (32 + 4 * p, 35 + 4 * p, 26 + p))
    for p in range(8):
        r = 8 + p
        a("v_lshlrev_b32 v%d, 16, v%d" % (r, r))
        a("v_mul_f32 v%d, 0xbfb8aa3b, v%d" % (16 + p, r))
        a("v_exp_f32 v%d, v%d" % (16 + p, 16 + p))
        a("v_add_f32 v%d, 1.0, v%d" % (16 + p, 16 + p))
        a("v_rcp_f32 v%d, v%d" % (16 + p, 16 + p))
        a("v_mul_f32 v%d, v%d, v%d" % (r, r, 16 + p))
    for p in range(0, 8, 2):
        round_pair(a, 8 + p, 9 + p, 8 + p, 9 + p, 16)
    for j in range(8):
        a("v_mov_b32 v%d, 0" % (64 + j))
    for p in range(8):
        for d in range(4):
            a("v_lshlrev_b32 v16, 16, v%d" % (32 + 4 * p + d))
            a("v_and_b32 v17, 0xffff0000, v%d" % (32 + 4 * p + d))
            a("v_fmac_f32 v%d, v%d, v16" % (64 + 2 * d, 8 + p))
            a("v_fmac_f32 v%d, v%d, v17" % (65 + 2 * d, 8 + p))
    for j in range(8):
        r = 64 + j
        a("v_add_f32_dpp v%d, v%d, v%d row_ror:4 row_mask:0xf bank_mask:0xf" % (72 + j, r, r))
    for j in range(8):
        r = 64 + j
        a("v_add_f32_dpp v%d, v%d, v%d row_ror:8 row_mask:0xf bank_mask:0xf" % (r, 72 + j, 72 + j))
    for j in range(8):
        a("ds_swizzle_b32 v%d, v%d offset:0x401F" % (72 + j, 64 + j))
    for j in range(8):
        a("v_add_f32 v%d, v%d, v%d" % (64 + j, 64 + j, 72 + j))
    for j in range(8):
        a("v_mov_b32 v%d, v%d" % (72 + j, 64 + j))
    for j in range(8):
        a("v_permlane32_swap_b32 v%d, v%d" % (64 + j, 72 + j))
    for j in range(8):
        a("v_add_f32 v%d, v%d, v%d" % (64 + j, 64 + j, 72 + j))
    a("v_lshlrev_b32 v7, 7, v2")
    a("v_lshl_add_u32 v7, v3, 5, v7")
    a("ds_write_b128 v7, v[64:67]")
    a("ds_write_b128 v7, v[68:71] offset:16")
    a("s_waitcnt lgkmcnt(0)")
    a("s_barrier")
    a("v_and_b32 v7, 31, v0")
    a("v_lshlrev_b32 v7, 2, v7")
    for w in range(8):
        a("ds_read_b32 v%d, v7 offset:%d" % (72 + w, w * 128))
    for w in range(1, 8):
        a("v_add_f32 v72, v72, v%d" % (72 + w))
    round_pair(a, 72, 73, 72, 72, 74)
    a("s_lshl_b32 s25, s2, 7")
    a("v_add_u32 v7, s25, v7")
    a("buffer_store_dword v72, v7, s[20:23], 0 offen")
    a.label("%s_end" % name)
    a("s_endpgm")
    return kernel_header(name) + a.finalize() + kernel_footer(name, 80, 40)


def gen_ln(name, src_ws_off, dst_ws_off, shift_chunk, scale_chunk):
    a = Asm()
    a("s_cmp_ge_u32 s2, 512")
    a("s_cbranch_scc1 %s_end" % name)
    load_ptr(a, 4, "x")
    load_ptr(a, 8, "ws")
    a("v_and_b32 v1, 63, v0")
    a("v_lshrrev_b32 v2, 6, v0")
    a("s_lshl_b32 s3, s2, 2")
    a("v_add_u32 v2, s3, v2")
    a("v_lshlrev_b32 v2, 11, v2")
    a("v_lshl_add_u32 v2, v1, 4, v2")
    a("v_lshlrev_b32 v3, 5, v1")
    a("s_waitcnt lgkmcnt(0)")
    if src_ws_off is None:
        make_srd(a, 12, 4, SZ_ACT)
    else:
        make_srd(a, 12, 8, SZ_ACT, src_ws_off)
    make_srd(a, 16, 8, SZ_ACT, dst_ws_off)
    make_srd(a, 20, 8, SZ_MOD, WS_MOD)
    a("buffer_load_dwordx4 v[8:11], v2, s[12:15], 0 offen")
    a("buffer_load_dwordx4 v[12:15], v2, s[12:15], 0 offen offset:1024")
    a("s_mov_b32 s24, %d" % (scale_chunk * 4096))
    a("s_mov_b32 s25, %d" % (shift_chunk * 4096))
    for base, s in ((32, 24), (48, 25)):
        a("buffer_load_dwordx4 v[%d:%d], v3, s[20:23], s%d offen" % (base, base + 3, s))
        a("buffer_load_dwordx4 v[%d:%d], v3, s[20:23], s%d offen offset:16" % (base + 4, base + 7, s))
        a("buffer_load_dwordx4 v[%d:%d], v3, s[20:23], s%d offen offset:2048" % (base + 8, base + 11, s))
        a("buffer_load_dwordx4 v[%d:%d], v3, s[20:23], s%d offen offset:2064" % (base + 12, base + 15, s))
    for d in range(8):
        a("v_lshlrev_b32 v%d, 16, v%d" % (16 + 2 * d, 8 + d))
        a("v_and_b32 v%d, 0xffff0000, v%d" % (17 + 2 * d, 8 + d))
    a("v_add_f32 v4, v16, v17")
    for i in range(2, 16):
        a("v_add_f32 v4, v4, v%d" % (16 + i))
    wave_reduce(a, 4, 5)
    a("v_mul_f32 v4, 0x3a800000, v4")
    a("v_sub_f32 v6, v16, v4")
    a("v_mul_f32 v7, v6, v6")
    for i in range(1, 16):
        a("v_sub_f32 v6, v%d, v4" % (16 + i))
        a("v_fmac_f32 v7, v6, v6")
    wave_reduce(a, 7, 5)
    a("v_mul_f32 v7, 0x3a800000, v7")
    round_pair(a, 4, 7, 4, 7, 5)
    a("v_add_f32 v7, 0x3727c5ac, v7")
    round_pair(a, 7, 6, 7, 7, 5)
    a("v_sqrt_f32 v7, v7")
    round_pair(a, 7, 6, 7, 7, 5)
    a("v_rcp_f32 v7, v7")
    for i in range(0, 16, 2):
        x0, x1 = 16 + i, 17 + i
        a("v_sub_f32 v%d, v%d, v4" % (x0, x0))
        a("v_sub_f32 v%d, v%d, v4" % (x1, x1))
        round_pair(a, x0, x1, x0, x1, 5)
        a("v_mul_f32 v%d, v%d, v7" % (x0, x0))
        a("v_mul_f32 v%d, v%d, v7" % (x1, x1))
        round_pair(a, x0, x1, x0, x1, 5)
        c0, c1 = 32 + i, 33 + i
        a("v_add_f32 v%d, 1.0, v%d" % (c0, c0))
        a("v_add_f32 v%d, 1.0, v%d" % (c1, c1))
        round_pair(a, c0, c1, c0, c1, 5)
        a("v_mul_f32 v%d, v%d, v%d" % (x0, x0, c0))
        a("v_mul_f32 v%d, v%d, v%d" % (x1, x1, c1))
        round_pair(a, x0, x1, x0, x1, 5)
        a("v_add_f32 v%d, v%d, v%d" % (x0, x0, 48 + i))
        a("v_add_f32 v%d, v%d, v%d" % (x1, x1, 49 + i))
        a("v_cvt_pk_bf16_f32 v%d, v%d, v%d" % (8 + i // 2, x0, x1))
    a("buffer_store_dwordx4 v[8:11], v2, s[16:19], 0 offen")
    a("buffer_store_dwordx4 v[12:15], v2, s[16:19], 0 offen offset:1024")
    a.label("%s_end" % name)
    a("s_endpgm")
    return kernel_header(name) + a.finalize() + kernel_footer(name, 64, 40)
```

```python
import sys
from common import *
from small import gen_mod, gen_ln
from gemm import gen_gemm
from attn import gen_attn

HEAD = """; adaLN-conditioned GQA attention block + SwiGLU FFN, gfx950.  Generated by gen/gen.py (hand-written generator).
"""

def build():
    launches = []
    bodies = []
    launches.append("; @launch kernel=mod_kernel grid=(192,1,1) block=(512,1,1) lds=1024")
    bodies.append(gen_mod("mod_kernel"))
    launches.append("; @launch kernel=ln1_kernel grid=(512,1,1) block=(256,1,1) lds=0")
    bodies.append(gen_ln("ln1_kernel", None, WS_H1, 0, 1))
    l, b = gen_gemm("qproj_kernel", WS_H1, 1024, ["wq"], 4096, 256, 128, 64, 3, 4, 2, "store", WS_Q, 4096, 8, 32, 2)
    launches.append(l); bodies.append(b)
    l, b = gen_attn("attn_kernel")
    launches.append(l); bodies.append(b)
    l, b = gen_gemm("oproj_kernel", WS_O, 4096, ["wo"], 1024, 128, 64, 64, 4, 4, 2, "resid", WS_X1, 1024, 16, 16, 2,
                    resid_ws=None, gate_chunk=2)
    launches.append(l); bodies.append(b)
    launches.append("; @launch kernel=ln2_kernel grid=(512,1,1) block=(256,1,1) lds=0")
    bodies.append(gen_ln("ln2_kernel", WS_X1, WS_H2, 3, 4))
    l, b = gen_gemm("gateup_kernel", WS_H2, 1024, ["wg", "wu"], 3584, 256, 128, 32, 4, 4, 2, "swiglu", WS_GU, 3584, 8, 28, 2)
    launches.append(l); bodies.append(b)
    l, b = gen_gemm("down_kernel", WS_GU, 3584, ["wd"], 1024, 128, 64, 64, 4, 4, 2, "resid", None, 1024, 16, 16, 2,
                    resid_ws=WS_X1, gate_chunk=5)
    launches.append(l); bodies.append(b)
    return HEAD + "\n".join(launches) + '\n.amdgcn_target "amdgcn-amd-amdhsa--gfx950"\n' + "\n".join(bodies)

if __name__ == "__main__":
    out = sys.argv[1] if len(sys.argv) > 1 else "adaLN_cond__gqa_block_cached__swiglu_ffn__prompt.s"
    open(out, "w").write(build())
    print("wrote", out)
```

```python
from common import *
import math, struct


def f2u(f):
    return struct.unpack("<I", struct.pack("<f", f))[0]


def qgemm_phase(a, name, L):
    vLane, vT, vQ, vP, vF, vS, vO = L["vLane"], L["vT"], L["vQ"], L["vP"], L["vF"], L["vS"], L["vO"]
    sW, sT, sA, sBq, sKA, sKB, sMA, sMB = L["sW"], L["sT"], L["sA"], L["sBq"], L["sKA"], L["sKB"], L["sMA"], L["sMB"]
    dma_k, dma_v, KROT = L["dma_k"], L["dma_v"], L["KROT"]
    sCnt = L["sCnt"]
    NST, NS, SA, SB = 3, 16, 32768, 16384
    STAGE = SA + SB
    acc = vO
    fA = [vS[0][0], vS[0][0] + 4]
    fB = [[vS[0][0] + 8 + 4 * j for j in range(4)], [vS[0][0] + 24 + 4 * j for j in range(4)]]
    vRA = [[vF[0] + 4 * st + kk for kk in range(4)] for st in range(NST)]
    vRB = [[vF[0] + 12 + 4 * st + j for j in range(4)] for st in range(NST)]
    vDA = [vP[0][0] + t for t in range(4)]
    vDB = [vP[0][0] + 4 + t for t in range(2)]
    make_srd(a, sA, 4, SZ_ACT, WS_H1)
    make_srd(a, sBq, 10, 1024 * 4096 * 2)
    a("s_lshl_b32 s%d, s%d, 5" % (sT[5], sW))
    a("s_sub_u32 s%d, s%d, s%d" % (sT[5], sT[3], sT[5]))
    a("s_lshl_b32 s%d, s%d, 5" % (sT[0], sW))
    a("v_lshrrev_b32 v%d, 3, v%d" % (vT[3], vLane))
    a("v_add_u32 v%d, s%d, v%d" % (vT[3], sT[0], vT[3]))
    a("v_and_b32 v%d, 7, v%d" % (vT[4], vLane))
    for t in range(4):
        a("v_add_u32 v%d, %d, v%d" % (vT[5], t * 8, vT[3]))
        a("v_bfe_u32 v%d, v%d, 1, 3" % (vT[6], vT[5]))
        a("v_xor_b32 v%d, v%d, v%d" % (vT[6], vT[6], vT[4]))
        a("v_add_u32 v%d, s%d, v%d" % (vT[5], sT[5], vT[5]))
        a("v_lshlrev_b32 v%d, 11, v%d" % (vT[5], vT[5]))
        a("v_lshl_add_u32 v%d, v%d, 4, v%d" % (vDA[t], vT[6], vT[5]))
        if t:
            a("v_subrev_u32 v%d, %d, v%d" % (vDA[t], t * 1024, vDA[t]))
    a("s_lshl_b32 s%d, s%d, 3" % (sT[0], sW))
    a("v_lshrrev_b32 v%d, 4, v%d" % (vT[3], vLane))
    a("v_add_u32 v%d, s%d, v%d" % (vT[3], sT[0], vT[3]))
    a("v_and_b32 v%d, 15, v%d" % (vT[4], vLane))
    a("v_and_b32 v%d, 3, v%d" % (vT[6], vT[3]))
    a("v_lshlrev_b32 v%d, 2, v%d" % (vT[6], vT[6]))
    a("v_xor_b32 v%d, v%d, v%d" % (vT[6], vT[6], vT[4]))
    for t in range(2):
        a("v_add_u32 v%d, %d, v%d" % (vT[5], t * 4, vT[3]))
        a("v_lshlrev_b32 v%d, 13, v%d" % (vT[5], vT[5]))
        a("v_lshl_add_u32 v%d, v%d, 4, v%d" % (vDB[t], vT[6], vT[5]))
        a("v_add_u32 v%d, s%d, v%d" % (vDB[t], sT[4], vDB[t]))
        if t:
            a("v_subrev_u32 v%d, %d, v%d" % (vDB[t], t * 1024, vDB[t]))
    a("s_lshl_b32 s%d, s%d, 12" % (sMA, sW))
    a("s_lshl_b32 s%d, s%d, 11" % (sMB, sW))
    a("s_add_u32 s%d, s%d, %d" % (sMB, sMB, SA))
    a("s_mov_b32 s%d, 0" % sKA)
    a("s_mov_b32 s%d, 0" % sKB)

    def dma_ops(slot):
        ops = ["s_add_u32 m0, s%d, %d" % (sMA, slot * STAGE)]
        for t in range(4):
            ops.append("buffer_load_dwordx4 v%d, s[%d:%d], s%d offen offset:%d lds" % (vDA[t], sA, sA + 3, sKA, t * 1024))
        ops.append("s_add_u32 m0, s%d, %d" % (sMB, slot * STAGE))
        for t in range(2):
            ops.append("buffer_load_dwordx4 v%d, s[%d:%d], s%d offen offset:%d lds" % (vDB[t], sBq, sBq + 3, sKB, t * 1024))
        ops.append("s_add_u32 s%d, s%d, 128" % (sKA, sKA))
        ops.append("s_add_u32 s%d, s%d, %d" % (sKB, sKB, 64 * 8192))
        return ops

    for st in range(NST):
        for o in dma_ops(st):
            a(o)
    a("s_lshl_b32 s%d, s%d, 5" % (sT[0], sW))
    a("v_add_u32 v%d, s%d, v%d" % (vT[3], sT[0], vT[0]))
    a("v_bfe_u32 v%d, v%d, 1, 3" % (vT[4], vT[3]))
    a("v_xor_b32 v%d, v%d, v%d" % (vT[4], vT[4], vT[2]))
    a("v_lshlrev_b32 v%d, 4, v%d" % (vT[4], vT[4]))
    a("v_lshl_add_u32 v%d, v%d, 7, v%d" % (vT[4], vT[3], vT[4]))
    for kk in range(4):
        a("v_xor_b32 v%d, %d, v%d" % (vRA[0][kk], kk << 5, vT[4]))
        for st in range(1, NST):
            a("v_add_u32 v%d, %d, v%d" % (vRA[st][kk], st * STAGE, vRA[0][kk]))
    a("v_bfe_u32 v%d, v%d, 2, 2" % (vT[3], vLane))
    a("v_and_b32 v%d, 3, v%d" % (vT[4], vLane))
    a("v_bfe_u32 v%d, v%d, 4, 1" % (vT[5], vLane))
    a("v_lshl_add_u32 v%d, v%d, 3, v%d" % (vT[6], vT[2], vT[3]))
    a("v_lshlrev_b32 v%d, 8, v%d" % (vT[6], vT[6]))
    a("v_and_b32 v%d, 1, v%d" % (vT[7], vT[4]))
    a("v_lshl_add_u32 v%d, v%d, 3, v%d" % (vT[6], vT[7], vT[6]))
    a("v_add_u32 v%d, %d, v%d" % (vT[6], SA, vT[6]))
    a("v_lshrrev_b32 v%d, 1, v%d" % (vT[4], vT[4]))
    a("v_lshl_add_u32 v%d, v%d, 1, v%d" % (vT[4], vT[5], vT[4]))
    for j in range(4):
        a("v_xor_b32 v%d, %d, v%d" % (vT[5], j, vT[3]))
        a("v_lshl_add_u32 v%d, v%d, 2, v%d" % (vT[5], vT[5], vT[4]))
        a("v_lshl_add_u32 v%d, v%d, 4, v%d" % (vRB[0][j], vT[5], vT[6]))
        for st in range(1, NST):
            a("v_add_u32 v%d, %d, v%d" % (vRB[st][j], st * STAGE, vRB[0][j]))
    for j in range(4):
        for r in range(16):
            a("v_mov_b32 v%d, 0" % (acc[j] + r))

    def read_ops(slot, kk, buf):
        ops = ["ds_read_b128 v[%d:%d], v%d" % (fA[buf], fA[buf] + 3, vRA[slot][kk])]
        for j in range(4):
            off = kk * 4096
            ops.append("ds_read_b64_tr_b16 v[%d:%d], v%d offset:%d" % (fB[buf][j], fB[buf][j] + 1, vRB[slot][j], off))
            ops.append("ds_read_b64_tr_b16 v[%d:%d], v%d offset:%d" % (fB[buf][j] + 2, fB[buf][j] + 3, vRB[slot][j], off + 1024))
        return ops

    def mfma_ops(buf):
        return ["v_mfma_f32_32x32x16_bf16 v[%d:%d], v[%d:%d], v[%d:%d], v[%d:%d]" % (
            acc[j], acc[j] + 15, fB[buf][j], fB[buf][j] + 3, fA[buf], fA[buf] + 3, acc[j], acc[j] + 15) for j in range(4)]

    def interleave(mf, others):
        n = len(mf)
        per = (len(others) + n - 1) // n if others else 0
        k = 0
        for m in mf:
            a(m)
            for o in others[k:k + per]:
                a(o)
            k += per
        for o in others[k:]:
            a(o)

    a("s_waitcnt vmcnt(12)")
    a("s_barrier")
    for o in read_ops(0, 0, 0):
        a(o)

    def step(it, in_loop, remain, extra):
        slot = it % NST
        for kk in range(4):
            buf = kk & 1
            if kk < 3:
                interleave(mfma_ops(buf), read_ops(slot, kk + 1, buf ^ 1))
            elif (not in_loop) and it == NS - 1:
                interleave(mfma_ops(buf), [])
            else:
                a("s_waitcnt vmcnt(%d) lgkmcnt(0)" % remain)
                a("s_barrier")
                interleave(mfma_ops(buf), read_ops((it + 1) % NST, 0, buf ^ 1) + extra)

    a("s_mov_b32 s%d, 4" % sCnt)
    a.loop_begin("%s_qloop" % name)
    for u in range(3):
        step(u, True, 6, dma_ops(u))
    a("s_sub_u32 s%d, s%d, 1" % (sCnt, sCnt))
    a("s_cmp_lg_u32 s%d, 0" % sCnt)
    a.loop_end("s_cbranch_scc1 %s_qloop" % name)
    step(12, False, 6, dma_ops(0))
    kl = []
    for t in range(3):
        kl += dma_k((t + KROT) % 4)
    vl = []
    for t in range(2):
        vl += dma_v(t)
    step(13, False, 6, kl)
    step(14, False, 6, vl)
    step(15, False, 0, [])
    for j in range(4):
        for qp in range(2):
            q = vQ[2 * j + qp]
            for d in range(4):
                r = acc[j] + 8 * qp + 2 * d
                a("v_cvt_pk_bf16_f32 v%d, v%d, v%d" % (q + d, r, r + 1))
            a("v_permlane32_swap_b32 v%d, v%d" % (q, q + 2))
            a("v_permlane32_swap_b32 v%d, v%d" % (q + 1, q + 3))


def gen_attn(name="attn_kernel", RING=6, DIST=4, dbg_novalu=False, dbg_noread=False, dbg_nomfma=False, dbg_nodma=False, dbg_nobar=False, dbg_clock=False, dbg_16=False, fuse_q=True, prefetch=True, PFN=1, VPG=5):
    a = Asm()
    nv = [1]

    def alloc(n, al=1):
        nv[0] = (nv[0] + al - 1) // al * al
        r = nv[0]
        nv[0] += n
        return r

    vLane = alloc(1)
    vT = [alloc(1) for _ in range(8)]
    vKA = [alloc(1) for _ in range(8)]
    vVA = [alloc(1) for _ in range(4)]
    vDK = [alloc(1) for _ in range(2)]
    vDV = alloc(1)
    vM, vL, vMc, vOut = alloc(1), alloc(1), alloc(1), alloc(1)
    vPF = alloc(1)
    vQ = [alloc(4, 4) for _ in range(8)]
    vP = [[alloc(4, 4) for _ in range(2)] for _ in range(2)]
    vF = [alloc(4, 4) for _ in range(RING)]
    vS = [[alloc(16, 4) for _ in range(2)] for _ in range(2)]
    vO = [alloc(16, 4) for _ in range(4)]
    NV = nv[0]
    assert NV <= 256, NV

    sQ, sK, sV, sOo = 12, 16, 20, 24
    sW, sKoff, sVoff, sCnt, sMK, sMV, sC, sThr = 28, 29, 30, 31, 32, 33, 34, 35
    sT = [36, 37, 38, 39, 40, 41]
    cexp = (128 ** -0.5) * math.log2(math.e)
    KBASE = 32768 if fuse_q else 0
    VBASE = 98304 if fuse_q else 65536
    KROT = 1 if fuse_q else 0
    sA, sBq, sKA, sKB, sMA, sMB = 44, 48, 52, 53, 54, 55

    a("s_cmp_ge_u32 s2, 256")
    a("s_cbranch_scc1 %s_end" % name)
    load_ptr(a, 4, "ws")
    load_ptr(a, 6, "k")
    load_ptr(a, 8, "v")
    load_ptr(a, 10, "wq")
    if dbg_clock:
        load_ptr(a, 50, "dbg")
        a("s_memtime s[60:61]")
        a("s_memrealtime s[62:63]")
    a("v_and_b32 v%d, 63, v0" % vLane)
    a("v_lshrrev_b32 v%d, 6, v0" % vT[0])
    a("v_readfirstlane_b32 s%d, v%d" % (sW, vT[0]))
    a("s_and_b32 s%d, s2, 7" % sT[0])
    a("s_lshr_b32 s%d, s2, 3" % sT[1])
    a("s_lshr_b32 s%d, s%d, 1" % (sT[2], sT[0]))
    a("s_and_b32 s%d, s%d, 1" % (sT[3], sT[0]))
    a("s_lshl_b32 s%d, s%d, 5" % (sT[3], sT[3]))
    a("s_add_u32 s%d, s%d, s%d" % (sT[3], sT[3], sT[1]))
    a("s_lshr_b32 s%d, s%d, 3" % (sT[4], sT[3]))
    a("s_lshl_b32 s%d, s%d, 3" % (sT[5], sT[2]))
    a("s_add_u32 s%d, s%d, s%d" % (sT[4], sT[4], sT[5]))
    a("s_and_b32 s%d, s%d, 7" % (sT[3], sT[3]))
    a("s_lshl_b32 s%d, s%d, 19" % (sKoff, sT[2]))
    a("s_mov_b32 s%d, s%d" % (sVoff, sKoff))
    a("s_mov_b32 s%d, 0x%x" % (sC, f2u(cexp)))
    a("s_mov_b32 s%d, 0x%x" % (sThr, f2u(8.0 / cexp)))
    a("s_waitcnt lgkmcnt(0)")
    make_srd(a, sQ, 4, SZ_Q, WS_Q)
    make_srd(a, sOo, 4, SZ_Q, WS_O)
    make_srd(a, sK, 6, 4 * 2048 * 128 * 2)
    make_srd(a, sV, 8, 4 * 2048 * 128 * 2)
    a("s_lshl_b32 s%d, s%d, 8" % (sT[3], sT[3]))
    a("s_lshl_b32 s%d, s%d, 5" % (sT[5], sW))
    a("s_add_u32 s%d, s%d, s%d" % (sT[3], sT[3], sT[5]))
    a("s_lshl_b32 s%d, s%d, 8" % (sT[4], sT[4]))
    a("v_and_b32 v%d, 31, v%d" % (vT[0], vLane))
    a("v_add_u32 v%d, s%d, v%d" % (vT[1], sT[3], vT[0]))
    a("v_lshlrev_b32 v%d, 13, v%d" % (vT[1], vT[1]))
    a("v_add_u32 v%d, s%d, v%d" % (vT[1], sT[4], vT[1]))
    a("v_lshrrev_b32 v%d, 5, v%d" % (vT[2], vLane))
    a("v_lshl_add_u32 v%d, v%d, 4, v%d" % (vOut, vT[2], vT[1]))
    if not fuse_q:
        for s in range(8):
            a("buffer_load_dwordx4 v[%d:%d], v%d, s[%d:%d], 0 offen offset:%d" % (vQ[s], vQ[s] + 3, vOut, sQ, sQ + 3, s * 32))
    a("v_lshrrev_b32 v%d, 4, v%d" % (vT[3], vLane))
    a("s_lshl_b32 s%d, s%d, 3" % (sT[0], sW))
    a("v_add_u32 v%d, s%d, v%d" % (vT[3], sT[0], vT[3]))
    a("v_and_b32 v%d, 15, v%d" % (vT[4], vLane))
    for t in range(2):
        a("v_add_u32 v%d, %d, v%d" % (vT[5], 4 * t, vT[3]))
        a("v_and_b32 v%d, 15, v%d" % (vT[6], vT[5]))
        a("v_xor_b32 v%d, v%d, v%d" % (vT[6], vT[6], vT[4]))
        a("v_lshlrev_b32 v%d, 8, v%d" % (vT[5], vT[3]))
        a("v_lshl_add_u32 v%d, v%d, 4, v%d" % (vDK[t], vT[6], vT[5]))
    a("v_and_b32 v%d, 3, v%d" % (vT[6], vT[3]))
    a("v_lshlrev_b32 v%d, 2, v%d" % (vT[6], vT[6]))
    a("v_xor_b32 v%d, v%d, v%d" % (vT[6], vT[6], vT[4]))
    a("v_lshlrev_b32 v%d, 8, v%d" % (vT[5], vT[3]))
    a("v_lshl_add_u32 v%d, v%d, 4, v%d" % (vDV, vT[6], vT[5]))
    a("s_lshl_b32 s%d, s%d, 11" % (sMK, sW))
    a("s_add_u32 s%d, s%d, %d" % (sMV, sMK, VBASE))
    if KBASE:
        a("s_add_u32 s%d, s%d, %d" % (sMK, sMK, KBASE))

    def dma_k(slot):
        return ["s_add_u32 m0, s%d, %d" % (sMK, slot * 16384),
                "buffer_load_dwordx4 v%d, s[%d:%d], s%d offen lds" % (vDK[0], sK, sK + 3, sKoff),
                "buffer_load_dwordx4 v%d, s[%d:%d], s%d offen offset:1024 lds" % (vDK[1], sK, sK + 3, sKoff),
                "s_add_u32 s%d, s%d, 16384" % (sKoff, sKoff)]

    def dma_v(slot):
        return ["s_add_u32 m0, s%d, %d" % (sMV, slot * 16384),
                "buffer_load_dwordx4 v%d, s[%d:%d], s%d offen lds" % (vDV, sV, sV + 3, sVoff),
                "buffer_load_dwordx4 v%d, s[%d:%d], s%d offen offset:1024 lds" % (vDV, sV, sV + 3, sVoff),
                "s_add_u32 s%d, s%d, 16384" % (sVoff, sVoff)]

    if not fuse_q:
        for o in dma_k(0):
            a(o)
        for g in range(3):
            for o in dma_k(g + 1) + dma_v(g):
                a(o)
    a("v_and_b32 v%d, 15, v%d" % (vT[4], vLane))
    a("v_xor_b32 v%d, v%d, v%d" % (vT[4], vT[4], vT[2]))
    a("v_lshlrev_b32 v%d, 4, v%d" % (vT[4], vT[4]))
    a("v_lshl_add_u32 v%d, v%d, 8, v%d" % (vT[4], vT[0], vT[4]))
    if KBASE:
        a("v_add_u32 v%d, %d, v%d" % (vT[4], KBASE, vT[4]))
    for s in range(8):
        a("v_xor_b32 v%d, %d, v%d" % (vKA[s], s << 5, vT[4]))
    a("v_bfe_u32 v%d, v%d, 2, 2" % (vT[3], vLane))
    a("v_and_b32 v%d, 3, v%d" % (vT[4], vLane))
    a("v_bfe_u32 v%d, v%d, 4, 1" % (vT[5], vLane))
    a("v_lshl_add_u32 v%d, v%d, 2, v%d" % (vT[6], vT[2], vT[3]))
    a("v_lshlrev_b32 v%d, 8, v%d" % (vT[6], vT[6]))
    a("v_and_b32 v%d, 1, v%d" % (vT[7], vT[4]))
    a("v_lshl_add_u32 v%d, v%d, 3, v%d" % (vT[6], vT[7], vT[6]))
    a("v_add_u32 v%d, 0x%x, v%d" % (vT[6], VBASE, vT[6]))
    a("v_lshrrev_b32 v%d, 1, v%d" % (vT[4], vT[4]))
    a("v_lshl_add_u32 v%d, v%d, 1, v%d" % (vT[4], vT[5], vT[4]))
    for db in range(4):
        a("v_xor_b32 v%d, %d, v%d" % (vT[5], db, vT[3]))
        a("v_lshl_add_u32 v%d, v%d, 2, v%d" % (vT[5], vT[5], vT[4]))
        a("v_lshl_add_u32 v%d, v%d, 4, v%d" % (vVA[db], vT[5], vT[6]))
    if fuse_q:
        qgemm_phase(a, name, locals())
    for db in range(4):
        for r in range(16):
            a("v_mov_b32 v%d, 0" % (vO[db] + r))
    a("v_mov_b32 v%d, 0xf149f2ca" % vM)
    a("v_mov_b32 v%d, 0" % vL)
    a("v_mov_b32 v%d, 0" % vMc)

    def k_read(slot, kb, s, f):
        return ["ds_read_b128 v[%d:%d], v%d offset:%d" % (vF[f], vF[f] + 3, vKA[s], slot * 16384 + kb * 8192)]

    def v_read(slot, kb, j, db, f):
        off = slot * 16384 + kb * 8192 + j * 4096
        return ["ds_read_b64_tr_b16 v[%d:%d], v%d offset:%d" % (vF[f], vF[f] + 1, vVA[db], off),
                "ds_read_b64_tr_b16 v[%d:%d], v%d offset:%d" % (vF[f] + 2, vF[f] + 3, vVA[db], off + 2048)]

    def qk_mfma(sb, kb, s, f):
        d = vS[sb][kb]
        c = "0" if s == 0 else "v[%d:%d]" % (d, d + 15)
        return "v_mfma_f32_32x32x16_bf16 v[%d:%d], v[%d:%d], v[%d:%d], %s" % (d, d + 15, vF[f], vF[f] + 3, vQ[s], vQ[s] + 3, c)

    def pv_mfma(kb, j, db, f):
        d = vO[db]
        return "v_mfma_f32_32x32x16_bf16 v[%d:%d], v[%d:%d], v[%d:%d], v[%d:%d]" % (
            d, d + 15, vF[f], vF[f] + 3, vP[kb][j], vP[kb][j] + 3, d, d + 15)

    if fuse_q:
        a("s_waitcnt vmcnt(8)")
        a("s_barrier")
    else:
        a("s_waitcnt vmcnt(12)")
        a("s_barrier")
    seq = [(kb, s) for kb in range(2) for s in range(8)]
    for n in range(min(DIST, 16)):
        for o in k_read(KROT % 4, seq[n][0], seq[n][1], n % RING):
            a(o)
    for n, (kb, s) in enumerate(seq):
        a(qk_mfma(0, kb, s, n % RING))
        if n + DIST < 16:
            for o in k_read(KROT % 4, seq[n + DIST][0], seq[n + DIST][1], (n + DIST) % RING):
                a(o)

    uid = [0]
    sPF = 56
    sPFoff = 68

    def tile_streams(i, with_qk):
        sb = i & 1
        S = vS[sb]
        mf = []
        if with_qk:
            for kb in range(2):
                for s in range(8):
                    mf.append(("k", kb, s, i))
        for kb in range(2):
            for j in range(2):
                for db in range(4):
                    mf.append(("v", kb, j, db, i))
        va = []
        t0, t1 = vT[0], vT[1]
        allS = [S[0] + r for r in range(16)] + [S[1] + r for r in range(16)]
        va.append("v_max3_f32 v%d, v%d, v%d, v%d" % (t0, allS[0], allS[1], allS[2]))
        va.append("v_max3_f32 v%d, v%d, v%d, v%d" % (t1, allS[3], allS[4], allS[5]))
        k = 6
        while k < 32:
            va.append("v_max3_f32 v%d, v%d, v%d, v%d" % (t0, t0, allS[k], allS[k + 1]))
            if k + 3 < 32:
                va.append("v_max3_f32 v%d, v%d, v%d, v%d" % (t1, t1, allS[k + 2], allS[k + 3]))
            k += 4
        va.append("v_max_f32 v%d, v%d, v%d" % (t0, t0, t1))
        va.append("v_mov_b32 v%d, v%d" % (t1, t0))
        va.append("v_permlane32_swap_b32 v%d, v%d" % (t0, t1))
        va.append("v_max_f32 v%d, v%d, v%d" % (t0, t0, t1))
        va.append("v_sub_f32 v%d, v%d, v%d" % (t1, t0, vM))
        va.append("v_cmp_lt_f32 vcc, s%d, v%d" % (sThr, t1))

        def rescale():
            uid[0] += 1
            lab = "%s_nors%d" % (name, uid[0])
            a("s_cbranch_vccz %s" % lab)
            a.cond(True)
            a("v_max_f32 v%d, v%d, v%d" % (t0, t0, vM))
            a("v_sub_f32 v%d, v%d, v%d" % (t1, vM, t0))
            a("v_mul_f32 v%d, s%d, v%d" % (t1, sC, t1))
            a("v_exp_f32 v%d, v%d" % (t1, t1))
            a("v_mov_b32 v%d, v%d" % (vM, t0))
            a("v_mul_f32 v%d, s%d, v%d" % (vMc, sC, t0))
            a("v_mul_f32 v%d, v%d, v%d" % (vL, vL, t1))
            for db in range(4):
                for r in range(16):
                    a("v_mul_f32 v%d, v%d, v%d" % (vO[db] + r, vO[db] + r, t1))
            a.cond(False)
            a.label(lab)

        va.append(rescale)
        for kb in range(2):
            for j in range(2):
                regs = [S[kb] + 8 * j + e for e in range(8)]
                for r in regs:
                    va.append("v_fma_f32 v%d, v%d, s%d, -v%d" % (r, r, sC, vMc))
                    va.append("v_exp_f32 v%d, v%d" % (r, r))
                for e in range(0, 8, 2):
                    va.append("v_add_f32 v%d, v%d, v%d" % (vT[2 + (e >> 1)], regs[e], regs[e + 1]))
                    va.append("v_cvt_pk_bf16_f32 v%d, v%d, v%d" % (vP[kb][j] + e // 2, regs[e], regs[e + 1]))
                va.append("v_add_f32 v%d, v%d, v%d" % (vT[2], vT[2], vT[3]))
                va.append("v_add_f32 v%d, v%d, v%d" % (vT[4], vT[4], vT[5]))
                va.append("v_add_f32 v%d, v%d, v%d" % (vL, vL, vT[2]))
                va.append("v_add_f32 v%d, v%d, v%d" % (vL, vL, vT[4]))
                va.append(("mark", kb, j))
        if dbg_novalu:
            va = [x for x in va if isinstance(x, tuple)]
        return mf, va

    def rd(e, f):
        if dbg_noread:
            return []
        if e[0] == "k":
            return k_read((e[3] + 1 + KROT) % 4, e[1], e[2], f)
        return v_read(e[4] % 4, e[1], e[2], e[3], f)

    def mm(e, f):
        if dbg_nomfma:
            return "s_nop 0"
        if e[0] == "k":
            return qk_mfma((e[3] & 1) ^ 1, e[1], e[2], f)
        return pv_mfma(e[1], e[2], e[3], f)

    def super_iteration(i, loads, last):
        a("s_waitcnt vmcnt(0)")
        if not dbg_nobar:
            a("s_barrier")
        dm = []
        if loads and not dbg_nodma:
            dm = dma_k((i + 3 + KROT) % 4) + dma_v((i + 2) % 4) + dma_k((i + 4 + KROT) % 4) + dma_v((i + 3) % 4)
            if prefetch:
                dm += ["s_mov_b32 m0, s%d" % (sPFoff + 1)]
                for t in range(2):
                    srd = 72 + 4 * ((i // 2) * 2 + t)
                    dm += ["buffer_load_dwordx4 v%d, s[%d:%d], s%d offen lds" % (vPF, srd, srd + 3, sPFoff)]
                if i == 2:
                    dm += ["s_add_u32 s%d, s%d, %d" % (sPFoff, sPFoff, 2048 * 1024)]
        streams = [tile_streams(i, True), tile_streams(i + 1, not last)]
        mf = streams[0][0] + streams[1][0]
        nmf = len(mf)
        for n in range(DIST):
            for o in rd(mf[n], n % RING):
                a(o)
        for o in dm:
            a(o)
        n = 0
        for ti in range(2):
            tmf, va = streams[ti]
            st = {"vi": 0}
            marks = set()

            def emit_va(cnt):
                c = 0
                while st["vi"] < len(va) and c < cnt:
                    x = va[st["vi"]]
                    st["vi"] += 1
                    if callable(x):
                        x()
                    elif isinstance(x, tuple):
                        marks.add((x[1], x[2]))
                        continue
                    else:
                        a(x)
                    c += 1

            emit_va(6)
            for e in tmf:
                if e[0] == "v":
                    while (e[1], e[2]) not in marks:
                        emit_va(1)
                a(mm(e, n % RING))
                if n + DIST < nmf:
                    for o in rd(mf[n + DIST], (n + DIST) % RING):
                        a(o)
                emit_va(VPG)
                n += 1
            assert st["vi"] == len(va)

    if prefetch:
        for t, (sl, sz) in enumerate((("wo", 4096 * 1024 * 2), ("wg", 1024 * 3584 * 2), ("wu", 1024 * 3584 * 2), ("wd", 1024 * 3584 * 2))):
            load_ptr(a, 60 + 2 * t, sl)
        a("s_waitcnt lgkmcnt(0)")
        for t, (sl, sz) in enumerate((("wo", 4096 * 1024 * 2), ("wg", 1024 * 3584 * 2), ("wu", 1024 * 3584 * 2), ("wd", 1024 * 3584 * 2))):
            make_srd(a, 72 + 4 * t, 60 + 2 * t, sz)
        a("s_mov_b32 s%d, 0" % sPFoff)
        a("s_lshl_b32 s%d, s%d, 10" % (sPFoff + 1, sW))
        a("s_lshl_b32 s%d, s2, 13" % sT[0])
        a("s_add_u32 s%d, s%d, s%d" % (sT[0], sT[0], sPFoff + 1))
        a("v_lshlrev_b32 v%d, 4, v%d" % (vPF, vLane))
        a("v_add_u32 v%d, s%d, v%d" % (vPF, sT[0], vPF))
    a("s_mov_b32 s%d, 7" % sCnt)
    a.loop_begin("%s_loop" % name)
    super_iteration(0, True, False)
    super_iteration(2, True, False)
    a("s_sub_u32 s%d, s%d, 1" % (sCnt, sCnt))
    a("s_cmp_lg_u32 s%d, 0" % sCnt)
    a.loop_end("s_cbranch_scc1 %s_loop" % name)
    super_iteration(0, True, False)
    super_iteration(2, False, True)

    a("v_mov_b32 v%d, v%d" % (vT[0], vL))
    a("v_permlane32_swap_b32 v%d, v%d" % (vL, vT[0]))
    a("v_add_f32 v%d, v%d, v%d" % (vL, vL, vT[0]))
    a("v_rcp_f32 v%d, v%d" % (vL, vL))
    for db in range(4):
        e = vS[0][0] + 8 * db
        for d in range(8):
            r0, r1 = vO[db] + 2 * d, vO[db] + 2 * d + 1
            a("v_mul_f32 v%d, v%d, v%d" % (r0, r0, vL))
            a("v_mul_f32 v%d, v%d, v%d" % (r1, r1, vL))
            a("v_cvt_pk_bf16_f32 v%d, v%d, v%d" % (e + d, r0, r1))
        for qp in range(2):
            t = e + 4 * qp
            a("v_permlane32_swap_b32 v%d, v%d" % (t, t + 2))
            a("v_permlane32_swap_b32 v%d, v%d" % (t + 1, t + 3))
            a("buffer_store_dwordx4 v[%d:%d], v%d, s[%d:%d], 0 offen offset:%d" % (t, t + 3, vOut, sOo, sOo + 3, db * 64 + qp * 32))
    if dbg_clock:
        a("s_waitcnt vmcnt(0)")
        a("s_memtime s[64:65]")
        a("s_memrealtime s[66:67]")
        a("s_waitcnt lgkmcnt(0)")
        a("s_sub_u32 s64, s64, s60")
        a("s_sub_u32 s66, s66, s62")
        make_srd(a, 52, 50, 256)
        a("v_mov_b32 v4, s64")
        a("v_mov_b32 v5, s66")
        a("v_mov_b32 v3, 0")
        a("s_cmp_lg_u32 s2, 0")
        a("s_cbranch_scc1 %s_end" % name)
        a("buffer_store_dwordx2 v[4:5], v3, s[52:55], 0 offen")
    a.label("%s_end" % name)
    a("s_endpgm")
    launch = "; @launch kernel=%s grid=(256,1,1) block=(512,1,1) lds=%d" % (name, 163840 if fuse_q else 131072)
    return launch, kernel_header(name) + a.finalize() + kernel_footer(name, NV, 96)
```

```python
from common import *


def lg2(x):
    n = x.bit_length() - 1
    assert 1 << n == x, x
    return n


def gen_gemm(name, a_ws, K, bslots, N, BM, PW, BK, NST, WM, WN, epi, out_ws, ldc, GM, GN, xm,
             resid_ws=None, gate_chunk=None, dbg_nodma=False, dbg_nomfma=False, dbg_noread=False, lda=None, dbg_noA=False, dbg_noB=False, dbg_maxwg=None, dbg_16=False):
    lda = lda or K
    NP = len(bslots)
    NW = WM * WN
    TM = BM // WM
    TNp = PW // WN
    IM = TM // 32
    JP = TNp // 32
    J = JP * NP
    NKK = BK // 16
    NS = K // BK
    SA = BM * BK * 2
    SB = BK * PW * 2
    STAGE = SA + NP * SB
    LDS = STAGE * NST
    assert LDS <= 160 * 1024
    nAw = SA // 1024 // NW
    nBw = SB // 1024 // NW
    assert nAw * 1024 * NW == SA and nBw * 1024 * NW == SB and nAw <= 4 and nBw <= 4
    L = nAw + NP * nBw
    CPR = BK // 8
    RPI = 1024 // (BK * 2)
    RPB = 16 // CPR
    CPRb = PW // 8
    RPIb = 1024 // (PW * 2)
    RB = max(1, 128 // PW)
    SPR = PW // 32
    gmask = min(SPR, 4) - 1
    NWG = GM * GN

    a = Asm()
    nv = [1]

    def alloc(n, al=1):
        nv[0] = (nv[0] + al - 1) // al * al
        r = nv[0]
        nv[0] += n
        return r

    vLane = alloc(1)
    vT = [alloc(1) for _ in range(6)]
    vDA = [alloc(1) for _ in range(nAw)]
    vDB = [alloc(1) for _ in range(nBw)]
    vRA = [[alloc(1) for _ in range(NKK)] for _ in range(NST)]
    vRB = [[alloc(1) for _ in range(JP)] for _ in range(NST)]
    vC = alloc(1)
    vX = alloc(1)
    vG = alloc(1)
    fA = [[alloc(4, 4) for _ in range(IM)] for _ in range(2)]
    fB = [[alloc(4, 4) for _ in range(J)] for _ in range(2)]
    vE = alloc(32, 4)
    acc = [[alloc(16, 4) for _ in range(J)] for _ in range(IM)]
    NV = nv[0]
    assert NV <= 256, NV

    sA, sB, sC, sX, sMod = 12, [16, 20], 24, 28, 32
    sM, sN, sW, sKA, sKB, sCnt, sMA = 36, 37, 38, 39, 40, 41, 42
    sMB = [43, 44]
    sT = [45, 46, 47, 48, 49, 50]

    a("s_cmp_ge_u32 s2, %d" % (NWG if dbg_maxwg is None else dbg_maxwg))
    a("s_cbranch_scc1 %s_end" % name)
    load_ptr(a, 4, "ws")
    for p, sl in enumerate(bslots):
        load_ptr(a, 6 + 2 * p, sl)
    load_ptr(a, 10, "x")
    load_ptr(a, 52, "out")
    a("v_and_b32 v%d, 63, v0" % vLane)
    a("v_lshrrev_b32 v%d, 6, v0" % vT[0])
    a("v_readfirstlane_b32 s%d, v%d" % (sW, vT[0]))
    gmx = GM // xm
    gnx = GN // (8 // xm)
    a("s_and_b32 s%d, s2, 7" % sT[0])
    a("s_lshr_b32 s%d, s2, 3" % sT[1])
    a("s_and_b32 s%d, s%d, %d" % (sT[2], sT[0], xm - 1))
    a("s_lshr_b32 s%d, s%d, %d" % (sT[3], sT[0], lg2(xm)))
    a("s_and_b32 s%d, s%d, %d" % (sT[4], sT[1], gmx - 1))
    a("s_lshr_b32 s%d, s%d, %d" % (sT[5], sT[1], lg2(gmx)))
    a("s_mul_i32 s%d, s%d, %d" % (sT[2], sT[2], gmx))
    a("s_add_u32 s%d, s%d, s%d" % (sM, sT[2], sT[4]))
    a("s_mul_i32 s%d, s%d, %d" % (sT[3], sT[3], gnx))
    a("s_add_u32 s%d, s%d, s%d" % (sN, sT[3], sT[5]))
    a("s_mul_i32 s%d, s%d, %d" % (sM, sM, BM))
    a("s_mul_i32 s%d, s%d, %d" % (sN, sN, PW))
    a("s_waitcnt lgkmcnt(0)")
    make_srd(a, sA, 4, 2048 * lda * 2, a_ws)
    for p in range(NP):
        make_srd(a, sB[p], 6 + 2 * p, K * N * 2)
    if out_ws is None:
        make_srd(a, sC, 52, 2048 * ldc * 2)
    else:
        make_srd(a, sC, 4, 2048 * ldc * 2, out_ws)
    if epi == "resid":
        if resid_ws is None:
            make_srd(a, sX, 10, SZ_ACT)
        else:
            make_srd(a, sX, 4, SZ_ACT, resid_ws)
        make_srd(a, sMod, 4, SZ_MOD, WS_MOD)

    a("s_mul_i32 s%d, s%d, %d" % (sT[0], sW, nAw * RPI))
    a("s_mov_b32 s%d, %d" % (sT[1], lda * 2))
    a("v_lshrrev_b32 v%d, %d, v%d" % (vT[0], lg2(CPR), vLane))
    a("v_add_u32 v%d, s%d, v%d" % (vT[0], sT[0], vT[0]))
    a("v_and_b32 v%d, %d, v%d" % (vT[1], CPR - 1, vLane))
    for t in range(nAw):
        a("v_add_u32 v%d, %d, v%d" % (vT[2], t * RPI, vT[0]))
        a("v_bfe_u32 v%d, v%d, %d, %d" % (vT[3], vT[2], lg2(RPB), lg2(CPR)))
        a("v_xor_b32 v%d, v%d, v%d" % (vT[3], vT[3], vT[1]))
        a("v_add_u32 v%d, s%d, v%d" % (vT[2], sM, vT[2]))
        a("v_mul_lo_u32 v%d, v%d, s%d" % (vT[2], vT[2], sT[1]))
        a("v_lshl_add_u32 v%d, v%d, 4, v%d" % (vDA[t], vT[3], vT[2]))
        if t:
            a("v_subrev_u32 v%d, %d, v%d" % (vDA[t], t * 1024, vDA[t]))
    a("s_mul_i32 s%d, s%d, %d" % (sT[0], sW, nBw * RPIb))
    a("s_mov_b32 s%d, %d" % (sT[1], N * 2))
    a("s_lshl_b32 s%d, s%d, 1" % (sT[2], sN))
    a("v_lshrrev_b32 v%d, %d, v%d" % (vT[0], lg2(CPRb), vLane))
    a("v_add_u32 v%d, s%d, v%d" % (vT[0], sT[0], vT[0]))
    a("v_and_b32 v%d, %d, v%d" % (vT[1], CPRb - 1, vLane))
    for t in range(nBw):
        a("v_add_u32 v%d, %d, v%d" % (vT[2], t * RPIb, vT[0]))
        a("v_lshrrev_b32 v%d, %d, v%d" % (vT[3], lg2(RB), vT[2]))
        a("v_and_b32 v%d, %d, v%d" % (vT[3], gmask, vT[3]))
        a("v_lshlrev_b32 v%d, 2, v%d" % (vT[3], vT[3]))
        a("v_xor_b32 v%d, v%d, v%d" % (vT[3], vT[3], vT[1]))
        a("v_mul_lo_u32 v%d, v%d, s%d" % (vT[2], vT[2], sT[1]))
        a("v_lshl_add_u32 v%d, v%d, 4, v%d" % (vDB[t], vT[3], vT[2]))
        a("v_add_u32 v%d, s%d, v%d" % (vDB[t], sT[2], vDB[t]))
        if t:
            a("v_subrev_u32 v%d, %d, v%d" % (vDB[t], t * 1024, vDB[t]))
    a("s_mul_i32 s%d, s%d, %d" % (sMA, sW, nAw * 1024))
    for p in range(NP):
        a("s_mul_i32 s%d, s%d, %d" % (sMB[p], sW, nBw * 1024))
        a("s_add_u32 s%d, s%d, %d" % (sMB[p], sMB[p], SA + p * SB))
    a("s_mov_b32 s%d, 0" % sKA)
    a("s_mov_b32 s%d, 0" % sKB)

    def dma_ops(slot):
        ops = []
        ops.append("s_add_u32 m0, s%d, %d" % (sMA, slot * STAGE))
        for t in range(nAw):
            ops.append("buffer_load_dwordx4 v%d, s[%d:%d], s%d offen offset:%d lds" % (vDA[t], sA, sA + 3, sKA, t * 1024))
        for p in range(NP):
            ops.append("s_add_u32 m0, s%d, %d" % (sMB[p], slot * STAGE))
            for t in range(nBw):
                ops.append("buffer_load_dwordx4 v%d, s[%d:%d], s%d offen offset:%d lds" % (vDB[t], sB[p], sB[p] + 3, sKB, t * 1024))
        if dbg_nodma:
            ops = [o for o in ops if not o.startswith("buffer_load")]
        if dbg_noA:
            ops = [o for o in ops if not (o.startswith("buffer_load") and "s[%d:" % sA in o)]
        if dbg_noB:
            ops = [o for o in ops if not (o.startswith("buffer_load") and "s[%d:" % sA not in o)]
        ops.append("s_add_u32 s%d, s%d, %d" % (sKA, sKA, BK * 2))
        ops.append("s_add_u32 s%d, s%d, %d" % (sKB, sKB, BK * N * 2))
        return ops

    for st in range(NST):
        for o in dma_ops(st):
            a(o)

    a("s_lshr_b32 s%d, s%d, %d" % (sT[0], sW, lg2(WN)))
    a("s_and_b32 s%d, s%d, %d" % (sT[1], sW, WN - 1))
    a("s_mul_i32 s%d, s%d, %d" % (sT[2], sT[0], TM))
    a("s_mul_i32 s%d, s%d, %d" % (sT[3], sT[1], TNp))
    a("v_and_b32 v%d, 31, v%d" % (vT[0], vLane))
    a("v_add_u32 v%d, s%d, v%d" % (vT[0], sT[2], vT[0]))
    a("v_lshrrev_b32 v%d, 5, v%d" % (vT[1], vLane))
    a("v_bfe_u32 v%d, v%d, %d, %d" % (vT[2], vT[0], lg2(RPB), lg2(CPR)))
    a("v_xor_b32 v%d, v%d, v%d" % (vT[2], vT[2], vT[1]))
    a("v_lshlrev_b32 v%d, 4, v%d" % (vT[2], vT[2]))
    a("v_lshl_add_u32 v%d, v%d, %d, v%d" % (vT[2], vT[0], lg2(BK * 2), vT[2]))
    for kk in range(NKK):
        a("v_xor_b32 v%d, %d, v%d" % (vRA[0][kk], kk << 5, vT[2]))
        for st in range(1, NST):
            a("v_add_u32 v%d, %d, v%d" % (vRA[st][kk], st * STAGE, vRA[0][kk]))
    a("v_add_u32 v%d, s%d, v%d" % (vT[0], sM, vT[0]))
    a("s_add_u32 s%d, s%d, s%d" % (sT[3], sT[3], sN))
    a("s_lshl_b32 s%d, s%d, 1" % (sT[4], sT[3]))
    a("s_mov_b32 s%d, %d" % (sT[5], ldc * 2))
    a("v_mul_lo_u32 v%d, v%d, s%d" % (vC, vT[0], sT[5]))
    a("v_add_u32 v%d, s%d, v%d" % (vC, sT[4], vC))
    a("v_lshl_add_u32 v%d, v%d, 4, v%d" % (vC, vT[1], vC))
    if epi == "resid":
        a("v_lshlrev_b32 v%d, 11, v%d" % (vX, vT[0]))
        a("v_add_u32 v%d, s%d, v%d" % (vX, sT[4], vX))
        a("v_lshl_add_u32 v%d, v%d, 3, v%d" % (vX, vT[1], vX))
        a("s_lshl_b32 s%d, s%d, 2" % (sT[4], sT[3]))
        a("s_add_u32 s%d, s%d, %d" % (sT[4], sT[4], gate_chunk * 4096))
        a("v_lshlrev_b32 v%d, 4, v%d" % (vG, vT[1]))
        a("v_add_u32 v%d, s%d, v%d" % (vG, sT[4], vG))
    a("s_mul_i32 s%d, s%d, %d" % (sT[3], sT[1], TNp // 8))
    a("v_bfe_u32 v%d, v%d, 2, 2" % (vT[0], vLane))
    a("v_and_b32 v%d, 3, v%d" % (vT[1], vLane))
    a("v_bfe_u32 v%d, v%d, 4, 1" % (vT[2], vLane))
    a("v_lshrrev_b32 v%d, 5, v%d" % (vT[3], vLane))
    a("v_lshl_add_u32 v%d, v%d, 3, v%d" % (vT[3], vT[3], vT[0]))
    a("v_lshlrev_b32 v%d, %d, v%d" % (vT[3], lg2(PW * 2), vT[3]))
    a("v_and_b32 v%d, 1, v%d" % (vT[4], vT[1]))
    a("v_lshl_add_u32 v%d, v%d, 3, v%d" % (vT[3], vT[4], vT[3]))
    a("v_add_u32 v%d, %d, v%d" % (vT[3], SA, vT[3]))
    a("v_lshrrev_b32 v%d, 1, v%d" % (vT[1], vT[1]))
    a("v_lshl_add_u32 v%d, v%d, 1, v%d" % (vT[1], vT[2], vT[1]))
    a("v_add_u32 v%d, s%d, v%d" % (vT[1], sT[3], vT[1]))
    a("v_lshrrev_b32 v%d, %d, v%d" % (vT[0], lg2(RB), vT[0]))
    a("v_and_b32 v%d, %d, v%d" % (vT[0], gmask, vT[0]))
    a("v_lshlrev_b32 v%d, 2, v%d" % (vT[0], vT[0]))
    for j in range(JP):
        a("v_add_u32 v%d, %d, v%d" % (vT[2], j * 4, vT[1]))
        a("v_xor_b32 v%d, v%d, v%d" % (vT[2], vT[2], vT[0]))
        a("v_lshl_add_u32 v%d, v%d, 4, v%d" % (vRB[0][j], vT[2], vT[3]))
        for st in range(1, NST):
            a("v_add_u32 v%d, %d, v%d" % (vRB[st][j], st * STAGE, vRB[0][j]))
    for i in range(IM):
        for j in range(J):
            for r in range(16):
                a("v_mov_b32 v%d, 0" % (acc[i][j] + r))

    def read_ops(slot, kk, buf):
        ops = []
        for i in range(IM):
            ops.append("ds_read_b128 v[%d:%d], v%d offset:%d" % (fA[buf][i], fA[buf][i] + 3, vRA[slot][kk], i * 32 * BK * 2))
        for j in range(J):
            p, jj = j // JP, j % JP
            off = p * SB + kk * 16 * PW * 2
            ops.append("ds_read_b64_tr_b16 v[%d:%d], v%d offset:%d" % (fB[buf][j], fB[buf][j] + 1, vRB[slot][jj], off))
            ops.append("ds_read_b64_tr_b16 v[%d:%d], v%d offset:%d" % (fB[buf][j] + 2, fB[buf][j] + 3, vRB[slot][jj], off + 4 * PW * 2))
        if dbg_noread:
            return []
        return ops

    def mfma_ops(buf):
        ops = []
        for i in range(IM):
            for j in range(J):
                ops.append("v_mfma_f32_32x32x16_bf16 v[%d:%d], v[%d:%d], v[%d:%d], v[%d:%d]" % (
                    acc[i][j], acc[i][j] + 15, fB[buf][j], fB[buf][j] + 3, fA[buf][i], fA[buf][i] + 3, acc[i][j], acc[i][j] + 15))
        if dbg_nomfma:
            return ["s_nop 0"]
        if dbg_16:
            ops = []
            for i in range(IM):
                for j in range(J):
                    for hh in range(2):
                        d = acc[i][j] + 4 * hh
                        ops.append("v_mfma_f32_16x16x32_bf16 v[%d:%d], v[%d:%d], v[%d:%d], v[%d:%d]" % (
                            d, d + 3, fB[buf][j], fB[buf][j] + 3, fA[buf][i], fA[buf][i] + 3, d, d + 3))
        return ops

    def interleave(mf, others):
        n = len(mf)
        per = (len(others) + n - 1) // n if others else 0
        k = 0
        for m in mf:
            a(m)
            for o in others[k:k + per]:
                a(o)
            k += per
        for o in others[k:]:
            a(o)

    a("s_waitcnt vmcnt(%d)" % ((NST - 1) * L))
    a("s_barrier")
    for o in read_ops(0, 0, 0):
        a(o)

    def step(it, in_loop):
        slot = it % NST
        for kk in range(NKK):
            buf = kk & 1
            if kk < NKK - 1:
                interleave(mfma_ops(buf), read_ops(slot, kk + 1, buf ^ 1))
            else:
                last = (not in_loop) and it == NS - 1
                if last:
                    interleave(mfma_ops(buf), [])
                else:
                    if in_loop:
                        remain = (NST - 2) * L
                        do_load = True
                    else:
                        remain = (min(it + NST - 1, NS - 1) - (it + 1)) * L
                        do_load = it + NST < NS
                    a("s_waitcnt vmcnt(%d) lgkmcnt(0)" % remain)
                    a("s_barrier")
                    others = read_ops((it + 1) % NST, 0, buf ^ 1)
                    if do_load:
                        others = others + dma_ops(slot)
                    interleave(mfma_ops(buf), others)

    nload = NS - NST
    Lp = (nload // NST) * NST if nload > 0 else 0
    if Lp:
        a("s_mov_b32 s%d, %d" % (sCnt, Lp // NST))
        a.loop_begin("%s_loop" % name)
        for u in range(NST):
            step(u, True)
        a("s_sub_u32 s%d, s%d, 1" % (sCnt, sCnt))
        a("s_cmp_lg_u32 s%d, 0" % sCnt)
        a.loop_end("s_cbranch_scc1 %s_loop" % name)
    for it in range(Lp, NS):
        step(it, False)

    def store_block(src4, i, j):
        for qp in range(2):
            t = src4 + 4 * qp
            a("v_permlane32_swap_b32 v%d, v%d" % (t, t + 2))
            a("v_permlane32_swap_b32 v%d, v%d" % (t + 1, t + 3))
            a("buffer_store_dwordx4 v[%d:%d], v%d, s[%d:%d], s%d offen offset:%d" % (
                t, t + 3, vC, sC, sC + 3, sT[0] if i else sT[1], j * 64 + qp * 32))

    a("s_mov_b32 s%d, 0" % sT[1])
    assert IM <= 2
    a("s_mov_b32 s%d, %d" % (sT[0], 32 * ldc * 2))
    a("s_mov_b32 s%d, %d" % (sT[2], 32 * 2048))
    if epi == "store":
        n = 0
        for i in range(IM):
            for j in range(J):
                e = vE + 8 * (n % 4)
                n += 1
                for d in range(8):
                    a("v_cvt_pk_bf16_f32 v%d, v%d, v%d" % (e + d, acc[i][j] + 2 * d, acc[i][j] + 2 * d + 1))
                store_block(e, i, j)
    elif epi == "resid":
        gbuf = fA[0][0]
        gregs = fA[0][0]
        assert fB[0][0] == fA[1][IM - 1] + 4
        for j in range(J):
            for q in range(4):
                a("buffer_load_dwordx4 v[%d:%d], v%d, s[%d:%d], 0 offen offset:%d" % (
                    gregs + 4 * q, gregs + 4 * q + 3, vG, sMod, sMod + 3, j * 128 + q * 32))
            for i in range(IM):
                xr = vE + 16
                for q in range(4):
                    a("buffer_load_dwordx2 v[%d:%d], v%d, s[%d:%d], s%d offen offset:%d" % (
                        xr + 2 * q, xr + 2 * q + 1, vX, sX, sX + 3, sT[2] if i else sT[1], j * 64 + q * 16))
                ac = acc[i][j]
                for d in range(8):
                    r0, r1 = ac + 2 * d, ac + 2 * d + 1
                    round_pair(a, r0, r1, r0, r1, vT[0])
                    a("v_mul_f32 v%d, v%d, v%d" % (r0, r0, gregs + 2 * d))
                    a("v_mul_f32 v%d, v%d, v%d" % (r1, r1, gregs + 2 * d + 1))
                    round_pair(a, r0, r1, r0, r1, vT[0])
                    a("v_lshlrev_b32 v%d, 16, v%d" % (vT[1], xr + d))
                    a("v_and_b32 v%d, 0xffff0000, v%d" % (vT[2], xr + d))
                    a("v_add_f32 v%d, v%d, v%d" % (r0, r0, vT[1]))
                    a("v_add_f32 v%d, v%d, v%d" % (r1, r1, vT[2]))
                    a("v_cvt_pk_bf16_f32 v%d, v%d, v%d" % (vE + 8 * (i & 1) + d, r0, r1))
                store_block(vE + 8 * (i & 1), i, j)
    elif epi == "swiglu":
        n = 0
        for i in range(IM):
            for j in range(JP):
                e = vE + 8 * (n % 4)
                n += 1
                g, u = acc[i][j], acc[i][j + JP]
                for d in range(8):
                    g0, g1, u0, u1 = g + 2 * d, g + 2 * d + 1, u + 2 * d, u + 2 * d + 1
                    round_pair(a, g0, g1, g0, g1, vT[0])
                    a("v_mul_f32 v%d, 0xbfb8aa3b, v%d" % (vT[1], g0))
                    a("v_mul_f32 v%d, 0xbfb8aa3b, v%d" % (vT[2], g1))
                    a("v_exp_f32 v%d, v%d" % (vT[1], vT[1]))
                    a("v_exp_f32 v%d, v%d" % (vT[2], vT[2]))
                    round_pair(a, u0, u1, u0, u1, vT[0])
                    a("v_add_f32 v%d, 1.0, v%d" % (vT[1], vT[1]))
                    a("v_add_f32 v%d, 1.0, v%d" % (vT[2], vT[2]))
                    a("v_rcp_f32 v%d, v%d" % (vT[1], vT[1]))
                    a("v_rcp_f32 v%d, v%d" % (vT[2], vT[2]))
                    a("v_mul_f32 v%d, v%d, v%d" % (g0, g0, vT[1]))
                    a("v_mul_f32 v%d, v%d, v%d" % (g1, g1, vT[2]))
                    round_pair(a, g0, g1, g0, g1, vT[0])
                    a("v_mul_f32 v%d, v%d, v%d" % (g0, g0, u0))
                    a("v_mul_f32 v%d, v%d, v%d" % (g1, g1, u1))
                    a("v_cvt_pk_bf16_f32 v%d, v%d, v%d" % (e + d, g0, g1))
                store_block(e, i, j)
    a.label("%s_end" % name)
    a("s_endpgm")
    launch = "; @launch kernel=%s grid=(%d,1,1) block=(%d,1,1) lds=%d" % (name, NWG, NW * 64, LDS)
    return launch, kernel_header(name) + a.finalize() + kernel_footer(name, NV, 64)
```

```python
import sys, copy
from common import *
from small import gen_mod, gen_ln
from gemm import gen_gemm
from attn import gen_attn

HEAD = """; adaLN-conditioned GQA attention block + SwiGLU FFN, gfx950.  Generated by gen/gen.py (hand-written generator).
"""

DEF = dict(
    q=dict(BM=256, PW=128, BK=64, NST=3, WM=4, WN=2, xm=2),
    o=dict(BM=128, PW=64, BK=64, NST=4, WM=4, WN=2, xm=2),
    gu=dict(BM=256, PW=128, BK=64, NST=2, WM=4, WN=2, xm=2),
    d=dict(BM=128, PW=64, BK=64, NST=4, WM=4, WN=2, xm=2),
    attn=dict(),
)

def build(cfg=None):
    c = copy.deepcopy(DEF)
    for k, v in (cfg or {}).items():
        c[k].update(v)
    launches = []
    bodies = []
    launches.append("; @launch kernel=mod_kernel grid=(192,1,1) block=(512,1,1) lds=1024")
    bodies.append(gen_mod("mod_kernel"))
    launches.append("; @launch kernel=ln1_kernel grid=(512,1,1) block=(256,1,1) lds=0")
    bodies.append(gen_ln("ln1_kernel", None, WS_H1, 0, 1))
    def G(name, p, a_ws, K, bs, N, epi, out_ws, ldc, **kw):
        extra = {k: v for k, v in p.items() if k not in ("BM", "PW", "BK", "NST", "WM", "WN", "xm")}
        l, b = gen_gemm(name, a_ws, K, bs, N, p["BM"], p["PW"], p["BK"], p["NST"], p["WM"], p["WN"], epi, out_ws, ldc,
                        2048 // p["BM"], N // p["PW"], p["xm"], **kw, **extra)
        launches.append(l); bodies.append(b)
    if not c["attn"].get("fuse_q", True):
        G("qproj_kernel", c["q"], WS_H1, 1024, ["wq"], 4096, "store", WS_Q, 4096)
    l, b = gen_attn("attn_kernel", **c["attn"])
    launches.append(l); bodies.append(b)
    G("oproj_kernel", c["o"], WS_O, 4096, ["wo"], 1024, "resid", WS_X1, 1024, resid_ws=None, gate_chunk=2)
    launches.append("; @launch kernel=ln2_kernel grid=(512,1,1) block=(256,1,1) lds=0")
    bodies.append(gen_ln("ln2_kernel", WS_X1, WS_H2, 3, 4))
    G("gateup_kernel", c["gu"], WS_H2, 1024, ["wg", "wu"], 3584, "swiglu", WS_GU, 3584)
    G("down_kernel", c["d"], WS_GU, 3584, ["wd"], 1024, "resid", None, 1024, resid_ws=WS_X1, gate_chunk=5)
    return HEAD + "\n".join(launches) + '\n.amdgcn_target "amdgcn-amd-amdhsa--gfx950"\n' + "\n".join(bodies)

if __name__ == "__main__":
    out = sys.argv[1] if len(sys.argv) > 1 else "adaLN_cond__gqa_block_cached__swiglu_ffn__prompt.s"
    open(out, "w").write(build())
    print("wrote", out)
```

```python
from common import *
import math, struct


def f2u(f):
    return struct.unpack("<I", struct.pack("<f", f))[0]


def qgemm_phase(a, name, L):
    vLane, vT, vQ, vP, vF, vS, vO = L["vLane"], L["vT"], L["vQ"], L["vP"], L["vF"], L["vS"], L["vO"]
    sW, sT, sA, sBq, sKA, sKB, sMA, sMB = L["sW"], L["sT"], L["sA"], L["sBq"], L["sKA"], L["sKB"], L["sMA"], L["sMB"]
    dma_k, dma_v, KROT = L["dma_k"], L["dma_v"], L["KROT"]
    sCnt = L["sCnt"]
    NST, NS, SA, SB = 3, 16, 32768, 16384
    STAGE = SA + SB
    acc = vO
    fA = [vS[0][0], vS[0][0] + 4]
    fB = [[vS[0][0] + 8 + 4 * j for j in range(4)], [vS[0][0] + 24 + 4 * j for j in range(4)]]
    vRA = [[vF[0] + 4 * st + kk for kk in range(4)] for st in range(NST)]
    vRB = [[vF[0] + 12 + 4 * st + j for j in range(4)] for st in range(NST)]
    vDA = [vP[0][0] + t for t in range(4)]
    vDB = [vP[0][0] + 4 + t for t in range(2)]
    make_srd(a, sA, 4, SZ_ACT, WS_H1)
    make_srd(a, sBq, 10, 1024 * 4096 * 2)
    a("s_lshl_b32 s%d, s%d, 5" % (sT[5], sW))
    a("s_sub_u32 s%d, s%d, s%d" % (sT[5], sT[3], sT[5]))
    a("s_lshl_b32 s%d, s%d, 5" % (sT[0], sW))
    a("v_lshrrev_b32 v%d, 3, v%d" % (vT[3], vLane))
    a("v_add_u32 v%d, s%d, v%d" % (vT[3], sT[0], vT[3]))
    a("v_and_b32 v%d, 7, v%d" % (vT[4], vLane))
    for t in range(4):
        a("v_add_u32 v%d, %d, v%d" % (vT[5], t * 8, vT[3]))
        a("v_bfe_u32 v%d, v%d, 1, 3" % (vT[6], vT[5]))
        a("v_xor_b32 v%d, v%d, v%d" % (vT[6], vT[6], vT[4]))
        a("v_add_u32 v%d, s%d, v%d" % (vT[5], sT[5], vT[5]))
        a("v_lshlrev_b32 v%d, 11, v%d" % (vT[5], vT[5]))
        a("v_lshl_add_u32 v%d, v%d, 4, v%d" % (vDA[t], vT[6], vT[5]))
        if t:
            a("v_subrev_u32 v%d, %d, v%d" % (vDA[t], t * 1024, vDA[t]))
    a("s_lshl_b32 s%d, s%d, 3" % (sT[0], sW))
    a("v_lshrrev_b32 v%d, 4, v%d" % (vT[3], vLane))
    a("v_add_u32 v%d, s%d, v%d" % (vT[3], sT[0], vT[3]))
    a("v_and_b32 v%d, 15, v%d" % (vT[4], vLane))
    a("v_and_b32 v%d, 3, v%d" % (vT[6], vT[3]))
    a("v_lshlrev_b32 v%d, 2, v%d" % (vT[6], vT[6]))
    a("v_xor_b32 v%d, v%d, v%d" % (vT[6], vT[6], vT[4]))
    for t in range(2):
        a("v_add_u32 v%d, %d, v%d" % (vT[5], t * 4, vT[3]))
        a("v_lshlrev_b32 v%d, 13, v%d" % (vT[5], vT[5]))
        a("v_lshl_add_u32 v%d, v%d, 4, v%d" % (vDB[t], vT[6], vT[5]))
        a("v_add_u32 v%d, s%d, v%d" % (vDB[t], sT[4], vDB[t]))
        if t:
            a("v_subrev_u32 v%d, %d, v%d" % (vDB[t], t * 1024, vDB[t]))
    a("s_lshl_b32 s%d, s%d, 12" % (sMA, sW))
    a("s_lshl_b32 s%d, s%d, 11" % (sMB, sW))
    a("s_add_u32 s%d, s%d, %d" % (sMB, sMB, SA))
    a("s_mov_b32 s%d, 0" % sKA)
    a("s_mov_b32 s%d, 0" % sKB)

    def dma_ops(slot):
        ops = ["s_add_u32 m0, s%d, %d" % (sMA, slot * STAGE)]
        for t in range(4):
            ops.append("buffer_load_dwordx4 v%d, s[%d:%d], s%d offen offset:%d lds" % (vDA[t], sA, sA + 3, sKA, t * 1024))
        ops.append("s_add_u32 m0, s%d, %d" % (sMB, slot * STAGE))
        for t in range(2):
            ops.append("buffer_load_dwordx4 v%d, s[%d:%d], s%d offen offset:%d lds" % (vDB[t], sBq, sBq + 3, sKB, t * 1024))
        ops.append("s_add_u32 s%d, s%d, 128" % (sKA, sKA))
        ops.append("s_add_u32 s%d, s%d, %d" % (sKB, sKB, 64 * 8192))
        return ops

    for st in range(NST):
        for o in dma_ops(st):
            a(o)
    a("s_lshl_b32 s%d, s%d, 5" % (sT[0], sW))
    a("v_add_u32 v%d, s%d, v%d" % (vT[3], sT[0], vT[0]))
    a("v_bfe_u32 v%d, v%d, 1, 3" % (vT[4], vT[3]))
    a("v_xor_b32 v%d, v%d, v%d" % (vT[4], vT[4], vT[2]))
    a("v_lshlrev_b32 v%d, 4, v%d" % (vT[4], vT[4]))
    a("v_lshl_add_u32 v%d, v%d, 7, v%d" % (vT[4], vT[3], vT[4]))
    for kk in range(4):
        a("v_xor_b32 v%d, %d, v%d" % (vRA[0][kk], kk << 5, vT[4]))
        for st in range(1, NST):
            a("v_add_u32 v%d, %d, v%d" % (vRA[st][kk], st * STAGE, vRA[0][kk]))
    a("v_bfe_u32 v%d, v%d, 2, 2" % (vT[3], vLane))
    a("v_and_b32 v%d, 3, v%d" % (vT[4], vLane))
    a("v_bfe_u32 v%d, v%d, 4, 1" % (vT[5], vLane))
    a("v_lshl_add_u32 v%d, v%d, 3, v%d" % (vT[6], vT[2], vT[3]))
    a("v_lshlrev_b32 v%d, 8, v%d" % (vT[6], vT[6]))
    a("v_and_b32 v%d, 1, v%d" % (vT[7], vT[4]))
    a("v_lshl_add_u32 v%d, v%d, 3, v%d" % (vT[6], vT[7], vT[6]))
    a("v_add_u32 v%d, %d, v%d" % (vT[6], SA, vT[6]))
    a("v_lshrrev_b32 v%d, 1, v%d" % (vT[4], vT[4]))
    a("v_lshl_add_u32 v%d, v%d, 1, v%d" % (vT[4], vT[5], vT[4]))
    for j in range(4):
        a("v_xor_b32 v%d, %d, v%d" % (vT[5], j, vT[3]))
        a("v_lshl_add_u32 v%d, v%d, 2, v%d" % (vT[5], vT[5], vT[4]))
        a("v_lshl_add_u32 v%d, v%d, 4, v%d" % (vRB[0][j], vT[5], vT[6]))
        for st in range(1, NST):
            a("v_add_u32 v%d, %d, v%d" % (vRB[st][j], st * STAGE, vRB[0][j]))
    for j in range(4):
        for r in range(16):
            a("v_mov_b32 v%d, 0" % (acc[j] + r))

    def read_ops(slot, kk, buf):
        ops = ["ds_read_b128 v[%d:%d], v%d" % (fA[buf], fA[buf] + 3, vRA[slot][kk])]
        for j in range(4):
            off = kk * 4096
            ops.append("ds_read_b64_tr_b16 v[%d:%d], v%d offset:%d" % (fB[buf][j], fB[buf][j] + 1, vRB[slot][j], off))
            ops.append("ds_read_b64_tr_b16 v[%d:%d], v%d offset:%d" % (fB[buf][j] + 2, fB[buf][j] + 3, vRB[slot][j], off + 1024))
        return ops

    def mfma_ops(buf):
        return ["v_mfma_f32_32x32x16_bf16 v[%d:%d], v[%d:%d], v[%d:%d], v[%d:%d]" % (
            acc[j], acc[j] + 15, fB[buf][j], fB[buf][j] + 3, fA[buf], fA[buf] + 3, acc[j], acc[j] + 15) for j in range(4)]

    def interleave(mf, others):
        n = len(mf)
        per = (len(others) + n - 1) // n if others else 0
        k = 0
        for m in mf:
            a(m)
            for o in others[k:k + per]:
                a(o)
            k += per
        for o in others[k:]:
            a(o)

    a("s_waitcnt vmcnt(12)")
    a("s_barrier")
    for o in read_ops(0, 0, 0):
        a(o)

    def step(it, in_loop, remain, extra):
        slot = it % NST
        for kk in range(4):
            buf = kk & 1
            if kk < 3:
                interleave(mfma_ops(buf), read_ops(slot, kk + 1, buf ^ 1))
            elif (not in_loop) and it == NS - 1:
                interleave(mfma_ops(buf), [])
            else:
                a("s_waitcnt vmcnt(%d) lgkmcnt(0)" % remain)
                a("s_barrier")
                interleave(mfma_ops(buf), read_ops((it + 1) % NST, 0, buf ^ 1) + extra)

    a("s_mov_b32 s%d, 4" % sCnt)
    a.loop_begin("%s_qloop" % name)
    for u in range(3):
        step(u, True, 6, dma_ops(u))
    a("s_sub_u32 s%d, s%d, 1" % (sCnt, sCnt))
    a("s_cmp_lg_u32 s%d, 0" % sCnt)
    a.loop_end("s_cbranch_scc1 %s_qloop" % name)
    step(12, False, 6, dma_ops(0))
    kl = []
    for t in range(3):
        kl += dma_k((t + KROT) % 4)
    vl = []
    for t in range(2):
        vl += dma_v(t)
    step(13, False, 6, kl)
    step(14, False, 6, vl)
    step(15, False, 0, [])
    for j in range(4):
        for qp in range(2):
            q = vQ[2 * j + qp]
            for d in range(4):
                r = acc[j] + 8 * qp + 2 * d
                a("v_cvt_pk_bf16_f32 v%d, v%d, v%d" % (q + d, r, r + 1))
            a("v_permlane32_swap_b32 v%d, v%d" % (q, q + 2))
            a("v_permlane32_swap_b32 v%d, v%d" % (q + 1, q + 3))


def gen_attn(name="attn_kernel", RING=6, DIST=4, dbg_novalu=False, dbg_noread=False, dbg_nomfma=False, dbg_nodma=False, dbg_nobar=False, dbg_clock=False, dbg_16=False, fuse_q=True, prefetch=True, PFN=1, VPG=5, pk=False, WG2=False):
    a = Asm()
    nv = [1]

    def alloc(n, al=1):
        nv[0] = (nv[0] + al - 1) // al * al
        r = nv[0]
        nv[0] += n
        return r

    vLane = alloc(1)
    vT = [alloc(1) for _ in range(8)]
    vKA = [alloc(1) for _ in range(8)]
    vVA = [alloc(1) for _ in range(4)]
    vDK = [alloc(1) for _ in range(2)]
    vDV = alloc(1)
    vM, vL, vMc, vOut = alloc(1), alloc(1), alloc(1), alloc(1)
    vPF = alloc(1)
    vMc2 = alloc(2, 2)
    vL2 = alloc(2, 2)
    vQ = [alloc(4, 4) for _ in range(8)]
    vP = [[alloc(4, 4) for _ in range(2)] for _ in range(2)]
    vF = [alloc(4, 4) for _ in range(RING)]
    vS = [[alloc(16, 4) for _ in range(2)] for _ in range(2)]
    vO = [alloc(16, 4) for _ in range(4)]
    NV = nv[0]
    assert NV <= 256, NV

    sQ, sK, sV, sOo = 12, 16, 20, 24
    sW, sKoff, sVoff, sCnt, sMK, sMV, sC, sThr = 28, 29, 30, 31, 32, 33, 34, 35
    sT = [36, 37, 38, 39, 40, 41]
    sC2 = 42
    cexp = (128 ** -0.5) * math.log2(math.e)
    KBASE = 32768 if fuse_q else 0
    VBASE = 98304 if fuse_q else 65536
    KROT = 1 if fuse_q else 0
    sA, sBq, sKA, sKB, sMA, sMB = 44, 48, 52, 53, 54, 55

    a("s_cmp_ge_u32 s2, 256")
    a("s_cbranch_scc1 %s_end" % name)
    load_ptr(a, 4, "ws")
    load_ptr(a, 6, "k")
    load_ptr(a, 8, "v")
    load_ptr(a, 10, "wq")
    if dbg_clock:
        load_ptr(a, 88, "dbg")
        a("s_memtime s[90:91]")
        a("s_memrealtime s[92:93]")
    a("v_and_b32 v%d, 63, v0" % vLane)
    a("v_lshrrev_b32 v%d, 6, v0" % vT[0])
    a("v_readfirstlane_b32 s%d, v%d" % (sW, vT[0]))
    a("s_and_b32 s%d, s2, 7" % sT[0])
    a("s_lshr_b32 s%d, s2, 3" % sT[1])
    a("s_lshr_b32 s%d, s%d, 1" % (sT[2], sT[0]))
    a("s_and_b32 s%d, s%d, 1" % (sT[3], sT[0]))
    a("s_lshl_b32 s%d, s%d, 5" % (sT[3], sT[3]))
    a("s_add_u32 s%d, s%d, s%d" % (sT[3], sT[3], sT[1]))
    a("s_lshr_b32 s%d, s%d, 3" % (sT[4], sT[3]))
    a("s_lshl_b32 s%d, s%d, 3" % (sT[5], sT[2]))
    a("s_add_u32 s%d, s%d, s%d" % (sT[4], sT[4], sT[5]))
    a("s_and_b32 s%d, s%d, 7" % (sT[3], sT[3]))
    a("s_lshl_b32 s%d, s%d, 19" % (sKoff, sT[2]))
    a("s_mov_b32 s%d, s%d" % (sVoff, sKoff))
    a("s_mov_b32 s%d, 0x%x" % (sC, f2u(cexp)))
    a("s_mov_b32 s%d, 0x%x" % (sThr, f2u(8.0 / cexp)))
    a("s_waitcnt lgkmcnt(0)")
    make_srd(a, sQ, 4, SZ_Q, WS_Q)
    make_srd(a, sOo, 4, SZ_Q, WS_O)
    make_srd(a, sK, 6, 4 * 2048 * 128 * 2)
    make_srd(a, sV, 8, 4 * 2048 * 128 * 2)
    a("s_lshl_b32 s%d, s%d, 8" % (sT[3], sT[3]))
    a("s_lshl_b32 s%d, s%d, 5" % (sT[5], sW))
    a("s_add_u32 s%d, s%d, s%d" % (sT[3], sT[3], sT[5]))
    a("s_lshl_b32 s%d, s%d, 8" % (sT[4], sT[4]))
    a("v_and_b32 v%d, 31, v%d" % (vT[0], vLane))
    a("v_add_u32 v%d, s%d, v%d" % (vT[1], sT[3], vT[0]))
    a("v_lshlrev_b32 v%d, 13, v%d" % (vT[1], vT[1]))
    a("v_add_u32 v%d, s%d, v%d" % (vT[1], sT[4], vT[1]))
    a("v_lshrrev_b32 v%d, 5, v%d" % (vT[2], vLane))
    a("v_lshl_add_u32 v%d, v%d, 4, v%d" % (vOut, vT[2], vT[1]))
    if not fuse_q:
        for s in range(8):
            a("buffer_load_dwordx4 v[%d:%d], v%d, s[%d:%d], 0 offen offset:%d" % (vQ[s], vQ[s] + 3, vOut, sQ, sQ + 3, s * 32))
    a("v_lshrrev_b32 v%d, 4, v%d" % (vT[3], vLane))
    a("s_lshl_b32 s%d, s%d, 3" % (sT[0], sW))
    a("v_add_u32 v%d, s%d, v%d" % (vT[3], sT[0], vT[3]))
    a("v_and_b32 v%d, 15, v%d" % (vT[4], vLane))
    for t in range(2):
        a("v_add_u32 v%d, %d, v%d" % (vT[5], 4 * t, vT[3]))
        a("v_and_b32 v%d, 15, v%d" % (vT[6], vT[5]))
        a("v_xor_b32 v%d, v%d, v%d" % (vT[6], vT[6], vT[4]))
        a("v_lshlrev_b32 v%d, 8, v%d" % (vT[5], vT[3]))
        a("v_lshl_add_u32 v%d, v%d, 4, v%d" % (vDK[t], vT[6], vT[5]))
    a("v_and_b32 v%d, 3, v%d" % (vT[6], vT[3]))
    a("v_lshlrev_b32 v%d, 2, v%d" % (vT[6], vT[6]))
    a("v_xor_b32 v%d, v%d, v%d" % (vT[6], vT[6], vT[4]))
    a("v_lshlrev_b32 v%d, 8, v%d" % (vT[5], vT[3]))
    a("v_lshl_add_u32 v%d, v%d, 4, v%d" % (vDV, vT[6], vT[5]))
    a("s_lshl_b32 s%d, s%d, 11" % (sMK, sW))
    a("s_add_u32 s%d, s%d, %d" % (sMV, sMK, VBASE))
    if KBASE:
        a("s_add_u32 s%d, s%d, %d" % (sMK, sMK, KBASE))

    def dma_k(slot):
        return ["s_add_u32 m0, s%d, %d" % (sMK, slot * 16384),
                "buffer_load_dwordx4 v%d, s[%d:%d], s%d offen lds" % (vDK[0], sK, sK + 3, sKoff),
                "buffer_load_dwordx4 v%d, s[%d:%d], s%d offen offset:1024 lds" % (vDK[1], sK, sK + 3, sKoff),
                "s_add_u32 s%d, s%d, 16384" % (sKoff, sKoff)]

    def dma_v(slot):
        return ["s_add_u32 m0, s%d, %d" % (sMV, slot * 16384),
                "buffer_load_dwordx4 v%d, s[%d:%d], s%d offen lds" % (vDV, sV, sV + 3, sVoff),
                "buffer_load_dwordx4 v%d, s[%d:%d], s%d offen offset:1024 lds" % (vDV, sV, sV + 3, sVoff),
                "s_add_u32 s%d, s%d, 16384" % (sVoff, sVoff)]

    if not fuse_q:
        for o in dma_k(0):
            a(o)
        for g in range(3):
            for o in dma_k(g + 1) + dma_v(g):
                a(o)
    a("v_and_b32 v%d, 15, v%d" % (vT[4], vLane))
    a("v_xor_b32 v%d, v%d, v%d" % (vT[4], vT[4], vT[2]))
    a("v_lshlrev_b32 v%d, 4, v%d" % (vT[4], vT[4]))
    a("v_lshl_add_u32 v%d, v%d, 8, v%d" % (vT[4], vT[0], vT[4]))
    if KBASE:
        a("v_add_u32 v%d, %d, v%d" % (vT[4], KBASE, vT[4]))
    for s in range(8):
        a("v_xor_b32 v%d, %d, v%d" % (vKA[s], s << 5, vT[4]))
    a("v_bfe_u32 v%d, v%d, 2, 2" % (vT[3], vLane))
    a("v_and_b32 v%d, 3, v%d" % (vT[4], vLane))
    a("v_bfe_u32 v%d, v%d, 4, 1" % (vT[5], vLane))
    a("v_lshl_add_u32 v%d, v%d, 2, v%d" % (vT[6], vT[2], vT[3]))
    a("v_lshlrev_b32 v%d, 8, v%d" % (vT[6], vT[6]))
    a("v_and_b32 v%d, 1, v%d" % (vT[7], vT[4]))
    a("v_lshl_add_u32 v%d, v%d, 3, v%d" % (vT[6], vT[7], vT[6]))
    a("v_add_u32 v%d, 0x%x, v%d" % (vT[6], VBASE, vT[6]))
    a("v_lshrrev_b32 v%d, 1, v%d" % (vT[4], vT[4]))
    a("v_lshl_add_u32 v%d, v%d, 1, v%d" % (vT[4], vT[5], vT[4]))
    for db in range(4):
        a("v_xor_b32 v%d, %d, v%d" % (vT[5], db, vT[3]))
        a("v_lshl_add_u32 v%d, v%d, 2, v%d" % (vT[5], vT[5], vT[4]))
        a("v_lshl_add_u32 v%d, v%d, 4, v%d" % (vVA[db], vT[5], vT[6]))
    if fuse_q:
        qgemm_phase(a, name, locals())
    for db in range(4):
        for r in range(16):
            a("v_mov_b32 v%d, 0" % (vO[db] + r))
    a("v_mov_b32 v%d, 0xf149f2ca" % vM)
    a("v_mov_b32 v%d, 0" % vL)
    a("v_mov_b32 v%d, 0" % vMc)
    a("v_mov_b32 v%d, 0" % vL2)
    a("v_mov_b32 v%d, 0" % (vL2 + 1))
    a("s_mov_b32 s%d, s%d" % (sC2, sC))
    a("s_mov_b32 s%d, s%d" % (sC2 + 1, sC))

    def k_read(slot, kb, s, f):
        return ["ds_read_b128 v[%d:%d], v%d offset:%d" % (vF[f], vF[f] + 3, vKA[s], slot * 16384 + kb * 8192)]

    def v_read(slot, kb, j, db, f):
        off = slot * 16384 + kb * 8192 + j * 4096
        return ["ds_read_b64_tr_b16 v[%d:%d], v%d offset:%d" % (vF[f], vF[f] + 1, vVA[db], off),
                "ds_read_b64_tr_b16 v[%d:%d], v%d offset:%d" % (vF[f] + 2, vF[f] + 3, vVA[db], off + 2048)]

    def qk_mfma(sb, kb, s, f):
        d = vS[sb][kb]
        c = "0" if s == 0 else "v[%d:%d]" % (d, d + 15)
        return "v_mfma_f32_32x32x16_bf16 v[%d:%d], v[%d:%d], v[%d:%d], %s" % (d, d + 15, vF[f], vF[f] + 3, vQ[s], vQ[s] + 3, c)

    def pv_mfma(kb, j, db, f):
        d = vO[db]
        return "v_mfma_f32_32x32x16_bf16 v[%d:%d], v[%d:%d], v[%d:%d], v[%d:%d]" % (
            d, d + 15, vF[f], vF[f] + 3, vP[kb][j], vP[kb][j] + 3, d, d + 15)

    if fuse_q:
        a("s_waitcnt vmcnt(8)")
        a("s_barrier")
    else:
        a("s_waitcnt vmcnt(12)")
        a("s_barrier")
    seq = [(kb, s) for kb in range(2) for s in range(8)]
    for n in range(min(DIST, 16)):
        for o in k_read(KROT % 4, seq[n][0], seq[n][1], n % RING):
            a(o)
    for n, (kb, s) in enumerate(seq):
        a(qk_mfma(0, kb, s, n % RING))
        if n + DIST < 16:
            for o in k_read(KROT % 4, seq[n + DIST][0], seq[n + DIST][1], (n + DIST) % RING):
                a(o)

    uid = [0]
    sPF = 56
    sPFoff = 68

    def tile_streams(i, with_qk):
        sb = i & 1
        S = vS[sb]
        mf = []
        if with_qk:
            for kb in range(2):
                for s in range(8):
                    mf.append(("k", kb, s, i))
        for kb in range(2):
            for j in range(2):
                for db in range(4):
                    mf.append(("v", kb, j, db, i))
        va = []
        t0, t1 = vT[0], vT[1]
        allS = [S[0] + r for r in range(16)] + [S[1] + r for r in range(16)]
        va.append("v_max3_f32 v%d, v%d, v%d, v%d" % (t0, allS[0], allS[1], allS[2]))
        va.append("v_max3_f32 v%d, v%d, v%d, v%d" % (t1, allS[3], allS[4], allS[5]))
        k = 6
        while k < 32:
            va.append("v_max3_f32 v%d, v%d, v%d, v%d" % (t0, t0, allS[k], allS[k + 1]))
            if k + 3 < 32:
                va.append("v_max3_f32 v%d, v%d, v%d, v%d" % (t1, t1, allS[k + 2], allS[k + 3]))
            k += 4
        va.append("v_max_f32 v%d, v%d, v%d" % (t0, t0, t1))
        va.append("v_mov_b32 v%d, v%d" % (t1, t0))
        va.append("v_permlane32_swap_b32 v%d, v%d" % (t0, t1))
        va.append("v_max_f32 v%d, v%d, v%d" % (t0, t0, t1))
        va.append("v_sub_f32 v%d, v%d, v%d" % (t1, t0, vM))
        va.append("v_cmp_lt_f32 vcc, s%d, v%d" % (sThr, t1))

        def rescale():
            uid[0] += 1
            lab = "%s_nors%d" % (name, uid[0])
            a("s_cbranch_vccz %s" % lab)
            a.cond(True)
            a("v_max_f32 v%d, v%d, v%d" % (t0, t0, vM))
            a("v_sub_f32 v%d, v%d, v%d" % (t1, vM, t0))
            a("v_mul_f32 v%d, s%d, v%d" % (t1, sC, t1))
            a("v_exp_f32 v%d, v%d" % (t1, t1))
            a("v_mov_b32 v%d, v%d" % (vM, t0))
            a("v_mul_f32 v%d, s%d, v%d" % (vMc, sC, t0))
            a("v_mul_f32 v%d, v%d, v%d" % (vL, vL, t1))
            if pk:
                a("v_mov_b32 v%d, v%d" % (vMc2, vMc))
                a("v_mov_b32 v%d, v%d" % (vMc2 + 1, vMc))
                a("v_mul_f32 v%d, v%d, v%d" % (vL2, vL2, t1))
                a("v_mul_f32 v%d, v%d, v%d" % (vL2 + 1, vL2 + 1, t1))
            for db in range(4):
                for r in range(16):
                    a("v_mul_f32 v%d, v%d, v%d" % (vO[db] + r, vO[db] + r, t1))
            a.cond(False)
            a.label(lab)

        va.append(rescale)
        for kb in range(2):
            for j in range(2):
                regs = [S[kb] + 8 * j + e for e in range(8)]
                if pk:
                    for e in range(0, 8, 2):
                        r = regs[e]
                        va.append("v_pk_fma_f32 v[%d:%d], v[%d:%d], s[%d:%d], v[%d:%d] neg_lo:[0,0,1] neg_hi:[0,0,1]" % (
                            r, r + 1, r, r + 1, sC2, sC2 + 1, vMc2, vMc2 + 1))
                        va.append("v_exp_f32 v%d, v%d" % (r, r))
                        va.append("v_exp_f32 v%d, v%d" % (r + 1, r + 1))
                    for e in range(0, 8, 2):
                        r = regs[e]
                        va.append("v_pk_add_f32 v[%d:%d], v[%d:%d], v[%d:%d]" % (vL2, vL2 + 1, vL2, vL2 + 1, r, r + 1))
                        va.append("v_cvt_pk_bf16_f32 v%d, v%d, v%d" % (vP[kb][j] + e // 2, regs[e], regs[e + 1]))
                else:
                    for r in regs:
                        va.append("v_fma_f32 v%d, v%d, s%d, -v%d" % (r, r, sC, vMc))
                        va.append("v_exp_f32 v%d, v%d" % (r, r))
                    for e in range(0, 8, 2):
                        va.append("v_add_f32 v%d, v%d, v%d" % (vT[2 + (e >> 1)], regs[e], regs[e + 1]))
                        va.append("v_cvt_pk_bf16_f32 v%d, v%d, v%d" % (vP[kb][j] + e // 2, regs[e], regs[e + 1]))
                    va.append("v_add_f32 v%d, v%d, v%d" % (vT[2], vT[2], vT[3]))
                    va.append("v_add_f32 v%d, v%d, v%d" % (vT[4], vT[4], vT[5]))
                    va.append("v_add_f32 v%d, v%d, v%d" % (vL, vL, vT[2]))
                    va.append("v_add_f32 v%d, v%d, v%d" % (vL, vL, vT[4]))
                va.append(("mark", kb, j))
        if dbg_novalu:
            va = [x for x in va if isinstance(x, tuple)]
        return mf, va

    def rd(e, f):
        if dbg_noread:
            return []
        if e[0] == "k":
            return k_read((e[3] + 1 + KROT) % 4, e[1], e[2], f)
        return v_read(e[4] % 4, e[1], e[2], e[3], f)

    def mm(e, f):
        if dbg_nomfma:
            return "s_nop 0"
        if dbg_16:
            d = vS[(e[3] & 1) ^ 1][e[1]] if e[0] == "k" else vO[e[3]]
            b = vQ[e[2]] if e[0] == "k" else vP[e[1]][e[2]]
            hh = 8 * (e[2] & 1)
            r = ""
            for x in (d + hh, d + hh + 4):
                c = "0" if (e[0] == "k" and e[2] < 2) else "v[%d:%d]" % (x, x + 3)
                r += "v_mfma_f32_16x16x32_bf16 v[%d:%d], v[%d:%d], v[%d:%d], %s\n" % (x, x + 3, vF[f], vF[f] + 3, b, b + 3, c)
            return r
        if e[0] == "k":
            return qk_mfma((e[3] & 1) ^ 1, e[1], e[2], f)
        return pv_mfma(e[1], e[2], e[3], f)

    def super_iteration(i, loads, last):
        a("s_waitcnt vmcnt(0)")
        if not dbg_nobar:
            a("s_barrier")
        dm = []
        if loads and not dbg_nodma:
            dm = dma_k((i + 3 + KROT) % 4) + dma_v((i + 2) % 4) + dma_k((i + 4 + KROT) % 4) + dma_v((i + 3) % 4)
            if prefetch:
                dm += ["s_mov_b32 m0, s%d" % (sPFoff + 1)]
                for t in range(2):
                    srd = 72 + 4 * ((i // 2) * 2 + t)
                    dm += ["buffer_load_dwordx4 v%d, s[%d:%d], s%d offen lds" % (vPF, srd, srd + 3, sPFoff)]
                if i == 2:
                    dm += ["s_add_u32 s%d, s%d, %d" % (sPFoff, sPFoff, 2048 * 1024)]
        streams = [tile_streams(i, True), tile_streams(i + 1, not last)]
        mf = streams[0][0] + streams[1][0]
        nmf = len(mf)
        for n in range(DIST):
            for o in rd(mf[n], n % RING):
                a(o)
        for o in dm:
            a(o)
        n = 0
        for ti in range(2):
            tmf, va = streams[ti]
            st = {"vi": 0}
            marks = set()

            def emit_va(cnt):
                c = 0
                while st["vi"] < len(va) and c < cnt:
                    x = va[st["vi"]]
                    st["vi"] += 1
                    if callable(x):
                        x()
                    elif isinstance(x, tuple):
                        marks.add((x[1], x[2]))
                        continue
                    else:
                        a(x)
                    c += 1

            emit_va(6)
            for e in tmf:
                if e[0] == "v":
                    while (e[1], e[2]) not in marks:
                        emit_va(1)
                if WG2 and n % 2 == 0 and n + 1 < nmf:
                    cnt = sum(len(rd(mf[x], 0)) for x in range(n + 2, min(n + DIST, nmf)))
                    a("s_waitcnt lgkmcnt(%d)" % cnt)
                a(mm(e, n % RING))
                if n + DIST < nmf:
                    for o in rd(mf[n + DIST], (n + DIST) % RING):
                        a(o)
                emit_va(VPG)
                n += 1
            assert st["vi"] == len(va)

    if prefetch:
        for t, (sl, sz) in enumerate((("wo", 4096 * 1024 * 2), ("wg", 1024 * 3584 * 2), ("wu", 1024 * 3584 * 2), ("wd", 1024 * 3584 * 2))):
            load_ptr(a, 60 + 2 * t, sl)
        a("s_waitcnt lgkmcnt(0)")
        for t, (sl, sz) in enumerate((("wo", 4096 * 1024 * 2), ("wg", 1024 * 3584 * 2), ("wu", 1024 * 3584 * 2), ("wd", 1024 * 3584 * 2))):
            make_srd(a, 72 + 4 * t, 60 + 2 * t, sz)
        a("s_mov_b32 s%d, 0" % sPFoff)
        a("s_lshl_b32 s%d, s%d, 10" % (sPFoff + 1, sW))
        a("s_lshl_b32 s%d, s2, 13" % sT[0])
        a("s_add_u32 s%d, s%d, s%d" % (sT[0], sT[0], sPFoff + 1))
        a("v_lshlrev_b32 v%d, 4, v%d" % (vPF, vLane))
        a("v_add_u32 v%d, s%d, v%d" % (vPF, sT[0], vPF))
    a("s_mov_b32 s%d, 7" % sCnt)
    a.loop_begin("%s_loop" % name)
    super_iteration(0, True, False)
    super_iteration(2, True, False)
    a("s_sub_u32 s%d, s%d, 1" % (sCnt, sCnt))
    a("s_cmp_lg_u32 s%d, 0" % sCnt)
    a.loop_end("s_cbranch_scc1 %s_loop" % name)
    super_iteration(0, True, False)
    super_iteration(2, False, True)

    if pk:
        a("v_add_f32 v%d, v%d, v%d" % (vL, vL2, vL2 + 1))
    a("v_mov_b32 v%d, v%d" % (vT[0], vL))
    a("v_permlane32_swap_b32 v%d, v%d" % (vL, vT[0]))
    a("v_add_f32 v%d, v%d, v%d" % (vL, vL, vT[0]))
    a("v_rcp_f32 v%d, v%d" % (vL, vL))
    for db in range(4):
        e = vS[0][0] + 8 * db
        for d in range(8):
            r0, r1 = vO[db] + 2 * d, vO[db] + 2 * d + 1
            a("v_mul_f32 v%d, v%d, v%d" % (r0, r0, vL))
            a("v_mul_f32 v%d, v%d, v%d" % (r1, r1, vL))
            a("v_cvt_pk_bf16_f32 v%d, v%d, v%d" % (e + d, r0, r1))
        for qp in range(2):
            t = e + 4 * qp
            a("v_permlane32_swap_b32 v%d, v%d" % (t, t + 2))
            a("v_permlane32_swap_b32 v%d, v%d" % (t + 1, t + 3))
            a("buffer_store_dwordx4 v[%d:%d], v%d, s[%d:%d], 0 offen offset:%d" % (t, t + 3, vOut, sOo, sOo + 3, db * 64 + qp * 32))
    if dbg_clock:
        a("s_waitcnt vmcnt(0)")
        a("s_memtime s[94:95]")
        a("s_memrealtime s[96:97]")
        a("s_waitcnt lgkmcnt(0)")
        a("s_sub_u32 s94, s94, s90")
        a("s_sub_u32 s96, s96, s92")
        make_srd(a, 84, 88, 256)
        a("v_mov_b32 v4, s94")
        a("v_mov_b32 v5, s96")
        a("v_mov_b32 v3, 0")
        a("s_cmp_lg_u32 s2, 0")
        a("s_cbranch_scc1 %s_end" % name)
        a("buffer_store_dwordx2 v[4:5], v3, s[84:87], 0 offen")
    a.label("%s_end" % name)
    a("s_endpgm")
    launch = "; @launch kernel=%s grid=(256,1,1) block=(512,1,1) lds=%d" % (name, 163840 if fuse_q else 131072)
    return launch, kernel_header(name) + a.finalize() + kernel_footer(name, NV, 100)
```

```python
from common import *


def lg2(x):
    n = x.bit_length() - 1
    assert 1 << n == x, x
    return n


def gen_gemm(name, a_ws, K, bslots, N, BM, PW, BK, NST, WM, WN, epi, out_ws, ldc, GM, GN, xm,
             resid_ws=None, gate_chunk=None, dbg_nodma=False, dbg_nomfma=False, dbg_noread=False, lda=None, dbg_noA=False, dbg_noB=False, dbg_maxwg=None, dbg_16=False):
    lda = lda or K
    NP = len(bslots)
    NW = WM * WN
    TM = BM // WM
    TNp = PW // WN
    IM = TM // 32
    JP = TNp // 32
    J = JP * NP
    NKK = BK // 16
    NS = K // BK
    SA = BM * BK * 2
    SB = BK * PW * 2
    STAGE = SA + NP * SB
    LDS = STAGE * NST
    assert LDS <= 160 * 1024
    nAw = SA // 1024 // NW
    nBw = SB // 1024 // NW
    assert nAw * 1024 * NW == SA and nBw * 1024 * NW == SB and nAw <= 4 and nBw <= 4
    L = nAw + NP * nBw
    CPR = BK // 8
    RPI = 1024 // (BK * 2)
    RPB = 16 // CPR
    CPRb = PW // 8
    RPIb = 1024 // (PW * 2)
    RB = max(1, 128 // PW)
    SPR = PW // 32
    gmask = min(SPR, 4) - 1
    NWG = GM * GN

    a = Asm()
    nv = [1]

    def alloc(n, al=1):
        nv[0] = (nv[0] + al - 1) // al * al
        r = nv[0]
        nv[0] += n
        return r

    vLane = alloc(1)
    vT = [alloc(1) for _ in range(6)]
    vDA = [alloc(1) for _ in range(nAw)]
    vDB = [alloc(1) for _ in range(nBw)]
    vRA = [[alloc(1) for _ in range(NKK)] for _ in range(NST)]
    vRB = [[alloc(1) for _ in range(JP)] for _ in range(NST)]
    vC = alloc(1)
    vX = alloc(1)
    vG = alloc(1)
    fA = [[alloc(4, 4) for _ in range(IM)] for _ in range(2)]
    fB = [[alloc(4, 4) for _ in range(J)] for _ in range(2)]
    vE = alloc(32, 4)
    pre = epi == "resid" and IM * J <= 2
    if pre:
        vGp = [alloc(16, 4) for _ in range(J)]
        vXp = [[alloc(8, 4) for _ in range(J)] for _ in range(IM)]
    acc = [[alloc(16, 4) for _ in range(J)] for _ in range(IM)]
    NV = nv[0]
    assert NV <= 256, NV

    sA, sB, sC, sX, sMod = 12, [16, 20], 24, 28, 32
    sM, sN, sW, sKA, sKB, sCnt, sMA = 36, 37, 38, 39, 40, 41, 42
    sMB = [43, 44]
    sT = [45, 46, 47, 48, 49, 50]

    a("s_cmp_ge_u32 s2, %d" % (NWG if dbg_maxwg is None else dbg_maxwg))
    a("s_cbranch_scc1 %s_end" % name)
    load_ptr(a, 4, "ws")
    for p, sl in enumerate(bslots):
        load_ptr(a, 6 + 2 * p, sl)
    load_ptr(a, 10, "x")
    load_ptr(a, 52, "out")
    a("v_and_b32 v%d, 63, v0" % vLane)
    a("v_lshrrev_b32 v%d, 6, v0" % vT[0])
    a("v_readfirstlane_b32 s%d, v%d" % (sW, vT[0]))
    gmx = GM // xm
    gnx = GN // (8 // xm)
    a("s_and_b32 s%d, s2, 7" % sT[0])
    a("s_lshr_b32 s%d, s2, 3" % sT[1])
    a("s_and_b32 s%d, s%d, %d" % (sT[2], sT[0], xm - 1))
    a("s_lshr_b32 s%d, s%d, %d" % (sT[3], sT[0], lg2(xm)))
    a("s_and_b32 s%d, s%d, %d" % (sT[4], sT[1], gmx - 1))
    a("s_lshr_b32 s%d, s%d, %d" % (sT[5], sT[1], lg2(gmx)))
    a("s_mul_i32 s%d, s%d, %d" % (sT[2], sT[2], gmx))
    a("s_add_u32 s%d, s%d, s%d" % (sM, sT[2], sT[4]))
    a("s_mul_i32 s%d, s%d, %d" % (sT[3], sT[3], gnx))
    a("s_add_u32 s%d, s%d, s%d" % (sN, sT[3], sT[5]))
    a("s_mul_i32 s%d, s%d, %d" % (sM, sM, BM))
    a("s_mul_i32 s%d, s%d, %d" % (sN, sN, PW))
    a("s_waitcnt lgkmcnt(0)")
    make_srd(a, sA, 4, 2048 * lda * 2, a_ws)
    for p in range(NP):
        make_srd(a, sB[p], 6 + 2 * p, K * N * 2)
    if out_ws is None:
        make_srd(a, sC, 52, 2048 * ldc * 2)
    else:
        make_srd(a, sC, 4, 2048 * ldc * 2, out_ws)
    if epi == "resid":
        if resid_ws is None:
            make_srd(a, sX, 10, SZ_ACT)
        else:
            make_srd(a, sX, 4, SZ_ACT, resid_ws)
        make_srd(a, sMod, 4, SZ_MOD, WS_MOD)

    a("s_mul_i32 s%d, s%d, %d" % (sT[0], sW, nAw * RPI))
    a("s_mov_b32 s%d, %d" % (sT[1], lda * 2))
    a("v_lshrrev_b32 v%d, %d, v%d" % (vT[0], lg2(CPR), vLane))
    a("v_add_u32 v%d, s%d, v%d" % (vT[0], sT[0], vT[0]))
    a("v_and_b32 v%d, %d, v%d" % (vT[1], CPR - 1, vLane))
    for t in range(nAw):
        a("v_add_u32 v%d, %d, v%d" % (vT[2], t * RPI, vT[0]))
        a("v_bfe_u32 v%d, v%d, %d, %d" % (vT[3], vT[2], lg2(RPB), lg2(CPR)))
        a("v_xor_b32 v%d, v%d, v%d" % (vT[3], vT[3], vT[1]))
        a("v_add_u32 v%d, s%d, v%d" % (vT[2], sM, vT[2]))
        a("v_mul_lo_u32 v%d, v%d, s%d" % (vT[2], vT[2], sT[1]))
        a("v_lshl_add_u32 v%d, v%d, 4, v%d" % (vDA[t], vT[3], vT[2]))
        if t:
            a("v_subrev_u32 v%d, %d, v%d" % (vDA[t], t * 1024, vDA[t]))
    a("s_mul_i32 s%d, s%d, %d" % (sT[0], sW, nBw * RPIb))
    a("s_mov_b32 s%d, %d" % (sT[1], N * 2))
    a("s_lshl_b32 s%d, s%d, 1" % (sT[2], sN))
    a("v_lshrrev_b32 v%d, %d, v%d" % (vT[0], lg2(CPRb), vLane))
    a("v_add_u32 v%d, s%d, v%d" % (vT[0], sT[0], vT[0]))
    a("v_and_b32 v%d, %d, v%d" % (vT[1], CPRb - 1, vLane))
    for t in range(nBw):
        a("v_add_u32 v%d, %d, v%d" % (vT[2], t * RPIb, vT[0]))
        a("v_lshrrev_b32 v%d, %d, v%d" % (vT[3], lg2(RB), vT[2]))
        a("v_and_b32 v%d, %d, v%d" % (vT[3], gmask, vT[3]))
        a("v_lshlrev_b32 v%d, 2, v%d" % (vT[3], vT[3]))
        a("v_xor_b32 v%d, v%d, v%d" % (vT[3], vT[3], vT[1]))
        a("v_mul_lo_u32 v%d, v%d, s%d" % (vT[2], vT[2], sT[1]))
        a("v_lshl_add_u32 v%d, v%d, 4, v%d" % (vDB[t], vT[3], vT[2]))
        a("v_add_u32 v%d, s%d, v%d" % (vDB[t], sT[2], vDB[t]))
        if t:
            a("v_subrev_u32 v%d, %d, v%d" % (vDB[t], t * 1024, vDB[t]))
    a("s_mul_i32 s%d, s%d, %d" % (sMA, sW, nAw * 1024))
    for p in range(NP):
        a("s_mul_i32 s%d, s%d, %d" % (sMB[p], sW, nBw * 1024))
        a("s_add_u32 s%d, s%d, %d" % (sMB[p], sMB[p], SA + p * SB))
    a("s_mov_b32 s%d, 0" % sKA)
    a("s_mov_b32 s%d, 0" % sKB)

    def dma_ops(slot):
        ops = []
        ops.append("s_add_u32 m0, s%d, %d" % (sMA, slot * STAGE))
        for t in range(nAw):
            ops.append("buffer_load_dwordx4 v%d, s[%d:%d], s%d offen offset:%d lds" % (vDA[t], sA, sA + 3, sKA, t * 1024))
        for p in range(NP):
            ops.append("s_add_u32 m0, s%d, %d" % (sMB[p], slot * STAGE))
            for t in range(nBw):
                ops.append("buffer_load_dwordx4 v%d, s[%d:%d], s%d offen offset:%d lds" % (vDB[t], sB[p], sB[p] + 3, sKB, t * 1024))
        if dbg_nodma:
            ops = [o for o in ops if not o.startswith("buffer_load")]
        if dbg_noA:
            ops = [o for o in ops if not (o.startswith("buffer_load") and "s[%d:" % sA in o)]
        if dbg_noB:
            ops = [o for o in ops if not (o.startswith("buffer_load") and "s[%d:" % sA not in o)]
        ops.append("s_add_u32 s%d, s%d, %d" % (sKA, sKA, BK * 2))
        ops.append("s_add_u32 s%d, s%d, %d" % (sKB, sKB, BK * N * 2))
        return ops

    for st in range(NST):
        for o in dma_ops(st):
            a(o)

    a("s_lshr_b32 s%d, s%d, %d" % (sT[0], sW, lg2(WN)))
    a("s_and_b32 s%d, s%d, %d" % (sT[1], sW, WN - 1))
    a("s_mul_i32 s%d, s%d, %d" % (sT[2], sT[0], TM))
    a("s_mul_i32 s%d, s%d, %d" % (sT[3], sT[1], TNp))
    a("v_and_b32 v%d, 31, v%d" % (vT[0], vLane))
    a("v_add_u32 v%d, s%d, v%d" % (vT[0], sT[2], vT[0]))
    a("v_lshrrev_b32 v%d, 5, v%d" % (vT[1], vLane))
    a("v_bfe_u32 v%d, v%d, %d, %d" % (vT[2], vT[0], lg2(RPB), lg2(CPR)))
    a("v_xor_b32 v%d, v%d, v%d" % (vT[2], vT[2], vT[1]))
    a("v_lshlrev_b32 v%d, 4, v%d" % (vT[2], vT[2]))
    a("v_lshl_add_u32 v%d, v%d, %d, v%d" % (vT[2], vT[0], lg2(BK * 2), vT[2]))
    for kk in range(NKK):
        a("v_xor_b32 v%d, %d, v%d" % (vRA[0][kk], kk << 5, vT[2]))
        for st in range(1, NST):
            a("v_add_u32 v%d, %d, v%d" % (vRA[st][kk], st * STAGE, vRA[0][kk]))
    a("v_add_u32 v%d, s%d, v%d" % (vT[0], sM, vT[0]))
    a("s_add_u32 s%d, s%d, s%d" % (sT[3], sT[3], sN))
    a("s_lshl_b32 s%d, s%d, 1" % (sT[4], sT[3]))
    a("s_mov_b32 s%d, %d" % (sT[5], ldc * 2))
    a("v_mul_lo_u32 v%d, v%d, s%d" % (vC, vT[0], sT[5]))
    a("v_add_u32 v%d, s%d, v%d" % (vC, sT[4], vC))
    a("v_lshl_add_u32 v%d, v%d, 4, v%d" % (vC, vT[1], vC))
    if epi == "resid":
        a("v_lshlrev_b32 v%d, 11, v%d" % (vX, vT[0]))
        a("v_add_u32 v%d, s%d, v%d" % (vX, sT[4], vX))
        a("v_lshl_add_u32 v%d, v%d, 3, v%d" % (vX, vT[1], vX))
        a("s_lshl_b32 s%d, s%d, 2" % (sT[4], sT[3]))
        a("s_add_u32 s%d, s%d, %d" % (sT[4], sT[4], gate_chunk * 4096))
        a("v_lshlrev_b32 v%d, 4, v%d" % (vG, vT[1]))
        a("v_add_u32 v%d, s%d, v%d" % (vG, sT[4], vG))
    npre = 0
    if pre:
        a("s_mov_b32 s%d, 0" % sT[5])
        a("s_mov_b32 s%d, %d" % (58, 32 * 2048))
        for j in range(J):
            for q in range(4):
                a("buffer_load_dwordx4 v[%d:%d], v%d, s[%d:%d], 0 offen offset:%d" % (
                    vGp[j] + 4 * q, vGp[j] + 4 * q + 3, vG, sMod, sMod + 3, j * 128 + q * 32))
                npre += 1
            for i in range(IM):
                for q in range(4):
                    a("buffer_load_dwordx2 v[%d:%d], v%d, s[%d:%d], s%d offen offset:%d" % (
                        vXp[i][j] + 2 * q, vXp[i][j] + 2 * q + 1, vX, sX, sX + 3, 58 if i else sT[5], j * 64 + q * 16))
                    npre += 1
    a("s_mul_i32 s%d, s%d, %d" % (sT[3], sT[1], TNp // 8))
    a("v_bfe_u32 v%d, v%d, 2, 2" % (vT[0], vLane))
    a("v_and_b32 v%d, 3, v%d" % (vT[1], vLane))
    a("v_bfe_u32 v%d, v%d, 4, 1" % (vT[2], vLane))
    a("v_lshrrev_b32 v%d, 5, v%d" % (vT[3], vLane))
    a("v_lshl_add_u32 v%d, v%d, 3, v%d" % (vT[3], vT[3], vT[0]))
    a("v_lshlrev_b32 v%d, %d, v%d" % (vT[3], lg2(PW * 2), vT[3]))
    a("v_and_b32 v%d, 1, v%d" % (vT[4], vT[1]))
    a("v_lshl_add_u32 v%d, v%d, 3, v%d" % (vT[3], vT[4], vT[3]))
    a("v_add_u32 v%d, %d, v%d" % (vT[3], SA, vT[3]))
    a("v_lshrrev_b32 v%d, 1, v%d" % (vT[1], vT[1]))
    a("v_lshl_add_u32 v%d, v%d, 1, v%d" % (vT[1], vT[2], vT[1]))
    a("v_add_u32 v%d, s%d, v%d" % (vT[1], sT[3], vT[1]))
    a("v_lshrrev_b32 v%d, %d, v%d" % (vT[0], lg2(RB), vT[0]))
    a("v_and_b32 v%d, %d, v%d" % (vT[0], gmask, vT[0]))
    a("v_lshlrev_b32 v%d, 2, v%d" % (vT[0], vT[0]))
    for j in range(JP):
        a("v_add_u32 v%d, %d, v%d" % (vT[2], j * 4, vT[1]))
        a("v_xor_b32 v%d, v%d, v%d" % (vT[2], vT[2], vT[0]))
        a("v_lshl_add_u32 v%d, v%d, 4, v%d" % (vRB[0][j], vT[2], vT[3]))
        for st in range(1, NST):
            a("v_add_u32 v%d, %d, v%d" % (vRB[st][j], st * STAGE, vRB[0][j]))
    for i in range(IM):
        for j in range(J):
            for r in range(16):
                a("v_mov_b32 v%d, 0" % (acc[i][j] + r))

    def read_ops(slot, kk, buf):
        ops = []
        for i in range(IM):
            ops.append("ds_read_b128 v[%d:%d], v%d offset:%d" % (fA[buf][i], fA[buf][i] + 3, vRA[slot][kk], i * 32 * BK * 2))
        for j in range(J):
            p, jj = j // JP, j % JP
            off = p * SB + kk * 16 * PW * 2
            ops.append("ds_read_b64_tr_b16 v[%d:%d], v%d offset:%d" % (fB[buf][j], fB[buf][j] + 1, vRB[slot][jj], off))
            ops.append("ds_read_b64_tr_b16 v[%d:%d], v%d offset:%d" % (fB[buf][j] + 2, fB[buf][j] + 3, vRB[slot][jj], off + 4 * PW * 2))
        if dbg_noread:
            return []
        return ops

    def mfma_ops(buf):
        ops = []
        for i in range(IM):
            for j in range(J):
                ops.append("v_mfma_f32_32x32x16_bf16 v[%d:%d], v[%d:%d], v[%d:%d], v[%d:%d]" % (
                    acc[i][j], acc[i][j] + 15, fB[buf][j], fB[buf][j] + 3, fA[buf][i], fA[buf][i] + 3, acc[i][j], acc[i][j] + 15))
        if dbg_nomfma:
            return ["s_nop 0"]
        if dbg_16:
            ops = []
            for i in range(IM):
                for j in range(J):
                    for hh in range(2):
                        d = acc[i][j] + 4 * hh
                        ops.append("v_mfma_f32_16x16x32_bf16 v[%d:%d], v[%d:%d], v[%d:%d], v[%d:%d]" % (
                            d, d + 3, fB[buf][j], fB[buf][j] + 3, fA[buf][i], fA[buf][i] + 3, d, d + 3))
        return ops

    def interleave(mf, others):
        n = len(mf)
        per = (len(others) + n - 1) // n if others else 0
        k = 0
        for m in mf:
            a(m)
            for o in others[k:k + per]:
                a(o)
            k += per
        for o in others[k:]:
            a(o)

    a("s_waitcnt vmcnt(%d)" % ((NST - 1) * L + npre))
    a("s_barrier")
    for o in read_ops(0, 0, 0):
        a(o)

    def step(it, in_loop):
        slot = it % NST
        for kk in range(NKK):
            buf = kk & 1
            if kk < NKK - 1:
                interleave(mfma_ops(buf), read_ops(slot, kk + 1, buf ^ 1))
            else:
                last = (not in_loop) and it == NS - 1
                if last:
                    interleave(mfma_ops(buf), [])
                else:
                    if in_loop:
                        remain = (NST - 2) * L
                        do_load = True
                    else:
                        remain = (min(it + NST - 1, NS - 1) - (it + 1)) * L
                        do_load = it + NST < NS
                    a("s_waitcnt vmcnt(%d) lgkmcnt(0)" % remain)
                    a("s_barrier")
                    others = read_ops((it + 1) % NST, 0, buf ^ 1)
                    if do_load:
                        others = others + dma_ops(slot)
                    interleave(mfma_ops(buf), others)

    nload = NS - NST
    Lp = (nload // NST) * NST if nload > 0 else 0
    if Lp:
        a("s_mov_b32 s%d, %d" % (sCnt, Lp // NST))
        a.loop_begin("%s_loop" % name)
        for u in range(NST):
            step(u, True)
        a("s_sub_u32 s%d, s%d, 1" % (sCnt, sCnt))
        a("s_cmp_lg_u32 s%d, 0" % sCnt)
        a.loop_end("s_cbranch_scc1 %s_loop" % name)
    for it in range(Lp, NS):
        step(it, False)

    def store_block(src4, i, j):
        for qp in range(2):
            t = src4 + 4 * qp
            a("v_permlane32_swap_b32 v%d, v%d" % (t, t + 2))
            a("v_permlane32_swap_b32 v%d, v%d" % (t + 1, t + 3))
            a("buffer_store_dwordx4 v[%d:%d], v%d, s[%d:%d], s%d offen offset:%d" % (
                t, t + 3, vC, sC, sC + 3, sT[0] if i else sT[1], j * 64 + qp * 32))

    a("s_mov_b32 s%d, 0" % sT[1])
    assert IM <= 2
    a("s_mov_b32 s%d, %d" % (sT[0], 32 * ldc * 2))
    a("s_mov_b32 s%d, %d" % (sT[2], 32 * 2048))
    if epi == "store":
        n = 0
        for i in range(IM):
            for j in range(J):
                e = vE + 8 * (n % 4)
                n += 1
                for d in range(8):
                    a("v_cvt_pk_bf16_f32 v%d, v%d, v%d" % (e + d, acc[i][j] + 2 * d, acc[i][j] + 2 * d + 1))
                store_block(e, i, j)
    elif epi == "resid":
        gbuf = fA[0][0]
        gregs = fA[0][0]
        assert fB[0][0] == fA[1][IM - 1] + 4
        for j in range(J):
            if pre:
                gregs = vGp[j]
            else:
                for q in range(4):
                    a("buffer_load_dwordx4 v[%d:%d], v%d, s[%d:%d], 0 offen offset:%d" % (
                        gregs + 4 * q, gregs + 4 * q + 3, vG, sMod, sMod + 3, j * 128 + q * 32))
            for i in range(IM):
                if pre:
                    xr = vXp[i][j]
                else:
                    xr = vE + 16
                    for q in range(4):
                        a("buffer_load_dwordx2 v[%d:%d], v%d, s[%d:%d], s%d offen offset:%d" % (
                            xr + 2 * q, xr + 2 * q + 1, vX, sX, sX + 3, sT[2] if i else sT[1], j * 64 + q * 16))
                ac = acc[i][j]
                for d in range(8):
                    r0, r1 = ac + 2 * d, ac + 2 * d + 1
                    round_pair(a, r0, r1, r0, r1, vT[0])
                    a("v_mul_f32 v%d, v%d, v%d" % (r0, r0, gregs + 2 * d))
                    a("v_mul_f32 v%d, v%d, v%d" % (r1, r1, gregs + 2 * d + 1))
                    round_pair(a, r0, r1, r0, r1, vT[0])
                    a("v_lshlrev_b32 v%d, 16, v%d" % (vT[1], xr + d))
                    a("v_and_b32 v%d, 0xffff0000, v%d" % (vT[2], xr + d))
                    a("v_add_f32 v%d, v%d, v%d" % (r0, r0, vT[1]))
                    a("v_add_f32 v%d, v%d, v%d" % (r1, r1, vT[2]))
                    a("v_cvt_pk_bf16_f32 v%d, v%d, v%d" % (vE + 8 * (i & 1) + d, r0, r1))
                store_block(vE + 8 * (i & 1), i, j)
    elif epi == "swiglu":
        n = 0
        for i in range(IM):
            for j in range(JP):
                e = vE + 8 * (n % 4)
                n += 1
                g, u = acc[i][j], acc[i][j + JP]
                for d in range(8):
                    g0, g1, u0, u1 = g + 2 * d, g + 2 * d + 1, u + 2 * d, u + 2 * d + 1
                    round_pair(a, g0, g1, g0, g1, vT[0])
                    a("v_mul_f32 v%d, 0xbfb8aa3b, v%d" % (vT[1], g0))
                    a("v_mul_f32 v%d, 0xbfb8aa3b, v%d" % (vT[2], g1))
                    a("v_exp_f32 v%d, v%d" % (vT[1], vT[1]))
                    a("v_exp_f32 v%d, v%d" % (vT[2], vT[2]))
                    round_pair(a, u0, u1, u0, u1, vT[0])
                    a("v_add_f32 v%d, 1.0, v%d" % (vT[1], vT[1]))
                    a("v_add_f32 v%d, 1.0, v%d" % (vT[2], vT[2]))
                    a("v_rcp_f32 v%d, v%d" % (vT[1], vT[1]))
                    a("v_rcp_f32 v%d, v%d" % (vT[2], vT[2]))
                    a("v_mul_f32 v%d, v%d, v%d" % (g0, g0, vT[1]))
                    a("v_mul_f32 v%d, v%d, v%d" % (g1, g1, vT[2]))
                    round_pair(a, g0, g1, g0, g1, vT[0])
                    a("v_mul_f32 v%d, v%d, v%d" % (g0, g0, u0))
                    a("v_mul_f32 v%d, v%d, v%d" % (g1, g1, u1))
                    a("v_cvt_pk_bf16_f32 v%d, v%d, v%d" % (e + d, g0, g1))
                store_block(e, i, j)
    a.label("%s_end" % name)
    a("s_endpgm")
    launch = "; @launch kernel=%s grid=(%d,1,1) block=(%d,1,1) lds=%d" % (name, NWG, NW * 64, LDS)
    return launch, kernel_header(name) + a.finalize() + kernel_footer(name, NV, 64)
```

```python
from common import *
import math, struct


def f2u(f):
    return struct.unpack("<I", struct.pack("<f", f))[0]


def qgemm_phase(a, name, L):
    vLane, vT, vQ, vP, vF, vS, vO = L["vLane"], L["vT"], L["vQ"], L["vP"], L["vF"], L["vS"], L["vO"]
    sW, sT, sA, sBq, sKA, sKB, sMA, sMB = L["sW"], L["sT"], L["sA"], L["sBq"], L["sKA"], L["sKB"], L["sMA"], L["sMB"]
    dma_k, dma_v, KROT = L["dma_k"], L["dma_v"], L["KROT"]
    sCnt = L["sCnt"]
    NST, NS, SA, SB = 3, 16, 32768, 16384
    STAGE = SA + SB
    acc = vO
    fA = [vS[0][0], vS[0][0] + 4]
    fB = [[vS[0][0] + 8 + 4 * j for j in range(4)], [vS[0][0] + 24 + 4 * j for j in range(4)]]
    vRA = [[vF[0] + 4 * st + kk for kk in range(4)] for st in range(NST)]
    vRB = [[vF[0] + 12 + 4 * st + j for j in range(4)] for st in range(NST)]
    vDA = [vP[0][0] + t for t in range(4)]
    vDB = [vP[0][0] + 4 + t for t in range(2)]
    make_srd(a, sA, 4, SZ_ACT, WS_H1)
    make_srd(a, sBq, 10, 1024 * 4096 * 2)
    a("s_lshl_b32 s%d, s%d, 5" % (sT[5], sW))
    a("s_sub_u32 s%d, s%d, s%d" % (sT[5], sT[3], sT[5]))
    a("s_lshl_b32 s%d, s%d, 5" % (sT[0], sW))
    a("v_lshrrev_b32 v%d, 3, v%d" % (vT[3], vLane))
    a("v_add_u32 v%d, s%d, v%d" % (vT[3], sT[0], vT[3]))
    a("v_and_b32 v%d, 7, v%d" % (vT[4], vLane))
    for t in range(4):
        a("v_add_u32 v%d, %d, v%d" % (vT[5], t * 8, vT[3]))
        a("v_bfe_u32 v%d, v%d, 1, 3" % (vT[6], vT[5]))
        a("v_xor_b32 v%d, v%d, v%d" % (vT[6], vT[6], vT[4]))
        a("v_add_u32 v%d, s%d, v%d" % (vT[5], sT[5], vT[5]))
        a("v_lshlrev_b32 v%d, 11, v%d" % (vT[5], vT[5]))
        a("v_lshl_add_u32 v%d, v%d, 4, v%d" % (vDA[t], vT[6], vT[5]))
        if t:
            a("v_subrev_u32 v%d, %d, v%d" % (vDA[t], t * 1024, vDA[t]))
    a("s_lshl_b32 s%d, s%d, 3" % (sT[0], sW))
    a("v_lshrrev_b32 v%d, 4, v%d" % (vT[3], vLane))
    a("v_add_u32 v%d, s%d, v%d" % (vT[3], sT[0], vT[3]))
    a("v_and_b32 v%d, 15, v%d" % (vT[4], vLane))
    a("v_and_b32 v%d, 3, v%d" % (vT[6], vT[3]))
    a("v_lshlrev_b32 v%d, 2, v%d" % (vT[6], vT[6]))
    a("v_xor_b32 v%d, v%d, v%d" % (vT[6], vT[6], vT[4]))
    for t in range(2):
        a("v_add_u32 v%d, %d, v%d" % (vT[5], t * 4, vT[3]))
        a("v_lshlrev_b32 v%d, 13, v%d" % (vT[5], vT[5]))
        a("v_lshl_add_u32 v%d, v%d, 4, v%d" % (vDB[t], vT[6], vT[5]))
        a("v_add_u32 v%d, s%d, v%d" % (vDB[t], sT[4], vDB[t]))
        if t:
            a("v_subrev_u32 v%d, %d, v%d" % (vDB[t], t * 1024, vDB[t]))
    a("s_lshl_b32 s%d, s%d, 12" % (sMA, sW))
    a("s_lshl_b32 s%d, s%d, 11" % (sMB, sW))
    a("s_add_u32 s%d, s%d, %d" % (sMB, sMB, SA))
    a("s_mov_b32 s%d, 0" % sKA)
    a("s_mov_b32 s%d, 0" % sKB)

    def dma_ops(slot):
        ops = ["s_add_u32 m0, s%d, %d" % (sMA, slot * STAGE)]
        for t in range(4):
            ops.append("buffer_load_dwordx4 v%d, s[%d:%d], s%d offen offset:%d lds" % (vDA[t], sA, sA + 3, sKA, t * 1024))
        ops.append("s_add_u32 m0, s%d, %d" % (sMB, slot * STAGE))
        for t in range(2):
            ops.append("buffer_load_dwordx4 v%d, s[%d:%d], s%d offen offset:%d lds" % (vDB[t], sBq, sBq + 3, sKB, t * 1024))
        ops.append("s_add_u32 s%d, s%d, 128" % (sKA, sKA))
        ops.append("s_add_u32 s%d, s%d, %d" % (sKB, sKB, 64 * 8192))
        return ops

    for st in range(NST):
        for o in dma_ops(st):
            a(o)
    a("s_lshl_b32 s%d, s%d, 5" % (sT[0], sW))
    a("v_add_u32 v%d, s%d, v%d" % (vT[3], sT[0], vT[0]))
    a("v_bfe_u32 v%d, v%d, 1, 3" % (vT[4], vT[3]))
    a("v_xor_b32 v%d, v%d, v%d" % (vT[4], vT[4], vT[2]))
    a("v_lshlrev_b32 v%d, 4, v%d" % (vT[4], vT[4]))
    a("v_lshl_add_u32 v%d, v%d, 7, v%d" % (vT[4], vT[3], vT[4]))
    for kk in range(4):
        a("v_xor_b32 v%d, %d, v%d" % (vRA[0][kk], kk << 5, vT[4]))
        for st in range(1, NST):
            a("v_add_u32 v%d, %d, v%d" % (vRA[st][kk], st * STAGE, vRA[0][kk]))
    a("v_bfe_u32 v%d, v%d, 2, 2" % (vT[3], vLane))
    a("v_and_b32 v%d, 3, v%d" % (vT[4], vLane))
    a("v_bfe_u32 v%d, v%d, 4, 1" % (vT[5], vLane))
    a("v_lshl_add_u32 v%d, v%d, 3, v%d" % (vT[6], vT[2], vT[3]))
    a("v_lshlrev_b32 v%d, 8, v%d" % (vT[6], vT[6]))
    a("v_and_b32 v%d, 1, v%d" % (vT[7], vT[4]))
    a("v_lshl_add_u32 v%d, v%d, 3, v%d" % (vT[6], vT[7], vT[6]))
    a("v_add_u32 v%d, %d, v%d" % (vT[6], SA, vT[6]))
    a("v_lshrrev_b32 v%d, 1, v%d" % (vT[4], vT[4]))
    a("v_lshl_add_u32 v%d, v%d, 1, v%d" % (vT[4], vT[5], vT[4]))
    for j in range(4):
        a("v_xor_b32 v%d, %d, v%d" % (vT[5], j, vT[3]))
        a("v_lshl_add_u32 v%d, v%d, 2, v%d" % (vT[5], vT[5], vT[4]))
        a("v_lshl_add_u32 v%d, v%d, 4, v%d" % (vRB[0][j], vT[5], vT[6]))
        for st in range(1, NST):
            a("v_add_u32 v%d, %d, v%d" % (vRB[st][j], st * STAGE, vRB[0][j]))
    for j in range(4):
        for r in range(16):
            a("v_mov_b32 v%d, 0" % (acc[j] + r))

    def read_ops(slot, kk, buf):
        ops = ["ds_read_b128 v[%d:%d], v%d" % (fA[buf], fA[buf] + 3, vRA[slot][kk])]
        for j in range(4):
            off = kk * 4096
            ops.append("ds_read_b64_tr_b16 v[%d:%d], v%d offset:%d" % (fB[buf][j], fB[buf][j] + 1, vRB[slot][j], off))
            ops.append("ds_read_b64_tr_b16 v[%d:%d], v%d offset:%d" % (fB[buf][j] + 2, fB[buf][j] + 3, vRB[slot][j], off + 1024))
        return ops

    def mfma_ops(buf):
        return ["v_mfma_f32_32x32x16_bf16 v[%d:%d], v[%d:%d], v[%d:%d], v[%d:%d]" % (
            acc[j], acc[j] + 15, fB[buf][j], fB[buf][j] + 3, fA[buf], fA[buf] + 3, acc[j], acc[j] + 15) for j in range(4)]

    def interleave(mf, others):
        n = len(mf)
        per = (len(others) + n - 1) // n if others else 0
        k = 0
        for m in mf:
            a(m)
            for o in others[k:k + per]:
                a(o)
            k += per
        for o in others[k:]:
            a(o)

    a("s_waitcnt vmcnt(12)")
    a("s_barrier")
    for o in read_ops(0, 0, 0):
        a(o)

    def step(it, in_loop, remain, extra):
        slot = it % NST
        for kk in range(4):
            buf = kk & 1
            if kk < 3:
                interleave(mfma_ops(buf), read_ops(slot, kk + 1, buf ^ 1))
            elif (not in_loop) and it == NS - 1:
                interleave(mfma_ops(buf), [])
            else:
                a("s_waitcnt vmcnt(%d) lgkmcnt(0)" % remain)
                a("s_barrier")
                interleave(mfma_ops(buf), read_ops((it + 1) % NST, 0, buf ^ 1) + extra)

    a("s_mov_b32 s%d, 4" % sCnt)
    a.loop_begin("%s_qloop" % name)
    for u in range(3):
        step(u, True, 6, dma_ops(u))
    a("s_sub_u32 s%d, s%d, 1" % (sCnt, sCnt))
    a("s_cmp_lg_u32 s%d, 0" % sCnt)
    a.loop_end("s_cbranch_scc1 %s_qloop" % name)
    step(12, False, 6, dma_ops(0))
    kl = []
    for t in range(3):
        kl += dma_k((t + KROT) % 4)
    vl = []
    for t in range(2):
        vl += dma_v(t)
    step(13, False, 6, kl)
    step(14, False, 6, vl)
    step(15, False, 0, [])
    for j in range(4):
        for qp in range(2):
            q = vQ[2 * j + qp]
            for d in range(4):
                r = acc[j] + 8 * qp + 2 * d
                a("v_cvt_pk_bf16_f32 v%d, v%d, v%d" % (q + d, r, r + 1))
            a("v_permlane32_swap_b32 v%d, v%d" % (q, q + 2))
            a("v_permlane32_swap_b32 v%d, v%d" % (q + 1, q + 3))


def gen_attn(name="attn_kernel", RING=6, DIST=4, dbg_novalu=False, dbg_noread=False, dbg_nomfma=False, dbg_nodma=False, dbg_nobar=False, dbg_clock=False, dbg_16=False, fuse_q=True, prefetch=True, PFN=1, PVORD=0, THR=32.0, VPG=5, pk=False, WG2=False):
    a = Asm()
    nv = [1]

    def alloc(n, al=1):
        nv[0] = (nv[0] + al - 1) // al * al
        r = nv[0]
        nv[0] += n
        return r

    vLane = alloc(1)
    vT = [alloc(1) for _ in range(8)]
    vKA = [alloc(1) for _ in range(8)]
    vVA = [alloc(1) for _ in range(4)]
    vDK = [alloc(1) for _ in range(2)]
    vDV = alloc(1)
    vM, vL, vMc, vOut = alloc(1), alloc(1), alloc(1), alloc(1)
    vPF = alloc(1)
    vMc2 = alloc(2, 2)
    vL2 = alloc(2, 2)
    vQ = [alloc(4, 4) for _ in range(8)]
    vP = [[alloc(4, 4) for _ in range(2)] for _ in range(2)]
    vF = [alloc(4, 4) for _ in range(RING)]
    vS = [[alloc(16, 4) for _ in range(2)] for _ in range(2)]
    vO = [alloc(16, 4) for _ in range(4)]
    NV = nv[0]
    assert NV <= 256, NV

    sQ, sK, sV, sOo = 12, 16, 20, 24
    sW, sKoff, sVoff, sCnt, sMK, sMV, sC, sThr = 28, 29, 30, 31, 32, 33, 34, 35
    sT = [36, 37, 38, 39, 40, 41]
    sC2 = 42
    cexp = (128 ** -0.5) * math.log2(math.e)
    KBASE = 32768 if fuse_q else 0
    VBASE = 98304 if fuse_q else 65536
    KROT = 1 if fuse_q else 0
    sA, sBq, sKA, sKB, sMA, sMB = 44, 48, 52, 53, 54, 55

    a("s_cmp_ge_u32 s2, 256")
    a("s_cbranch_scc1 %s_end" % name)
    load_ptr(a, 4, "ws")
    load_ptr(a, 6, "k")
    load_ptr(a, 8, "v")
    load_ptr(a, 10, "wq")
    if dbg_clock:
        load_ptr(a, 88, "dbg")
        a("s_memtime s[90:91]")
        a("s_memrealtime s[92:93]")
    a("v_and_b32 v%d, 63, v0" % vLane)
    a("v_lshrrev_b32 v%d, 6, v0" % vT[0])
    a("v_readfirstlane_b32 s%d, v%d" % (sW, vT[0]))
    a("s_and_b32 s%d, s2, 7" % sT[0])
    a("s_lshr_b32 s%d, s2, 3" % sT[1])
    a("s_lshr_b32 s%d, s%d, 1" % (sT[2], sT[0]))
    a("s_and_b32 s%d, s%d, 1" % (sT[3], sT[0]))
    a("s_lshl_b32 s%d, s%d, 5" % (sT[3], sT[3]))
    a("s_add_u32 s%d, s%d, s%d" % (sT[3], sT[3], sT[1]))
    a("s_lshr_b32 s%d, s%d, 3" % (sT[4], sT[3]))
    a("s_lshl_b32 s%d, s%d, 3" % (sT[5], sT[2]))
    a("s_add_u32 s%d, s%d, s%d" % (sT[4], sT[4], sT[5]))
    a("s_and_b32 s%d, s%d, 7" % (sT[3], sT[3]))
    a("s_lshl_b32 s%d, s%d, 19" % (sKoff, sT[2]))
    a("s_mov_b32 s%d, s%d" % (sVoff, sKoff))
    a("s_mov_b32 s%d, 0x%x" % (sC, f2u(cexp)))
    a("s_mov_b32 s%d, 0x%x" % (sThr, f2u(THR / cexp)))
    a("s_waitcnt lgkmcnt(0)")
    make_srd(a, sQ, 4, SZ_Q, WS_Q)
    make_srd(a, sOo, 4, SZ_Q, WS_O)
    make_srd(a, sK, 6, 4 * 2048 * 128 * 2)
    make_srd(a, sV, 8, 4 * 2048 * 128 * 2)
    a("s_lshl_b32 s%d, s%d, 8" % (sT[3], sT[3]))
    a("s_lshl_b32 s%d, s%d, 5" % (sT[5], sW))
    a("s_add_u32 s%d, s%d, s%d" % (sT[3], sT[3], sT[5]))
    a("s_lshl_b32 s%d, s%d, 8" % (sT[4], sT[4]))
    a("v_and_b32 v%d, 31, v%d" % (vT[0], vLane))
    a("v_add_u32 v%d, s%d, v%d" % (vT[1], sT[3], vT[0]))
    a("v_lshlrev_b32 v%d, 13, v%d" % (vT[1], vT[1]))
    a("v_add_u32 v%d, s%d, v%d" % (vT[1], sT[4], vT[1]))
    a("v_lshrrev_b32 v%d, 5, v%d" % (vT[2], vLane))
    a("v_lshl_add_u32 v%d, v%d, 4, v%d" % (vOut, vT[2], vT[1]))
    if not fuse_q:
        for s in range(8):
            a("buffer_load_dwordx4 v[%d:%d], v%d, s[%d:%d], 0 offen offset:%d" % (vQ[s], vQ[s] + 3, vOut, sQ, sQ + 3, s * 32))
    a("v_lshrrev_b32 v%d, 4, v%d" % (vT[3], vLane))
    a("s_lshl_b32 s%d, s%d, 3" % (sT[0], sW))
    a("v_add_u32 v%d, s%d, v%d" % (vT[3], sT[0], vT[3]))
    a("v_and_b32 v%d, 15, v%d" % (vT[4], vLane))
    for t in range(2):
        a("v_add_u32 v%d, %d, v%d" % (vT[5], 4 * t, vT[3]))
        a("v_and_b32 v%d, 15, v%d" % (vT[6], vT[5]))
        a("v_xor_b32 v%d, v%d, v%d" % (vT[6], vT[6], vT[4]))
        a("v_lshlrev_b32 v%d, 8, v%d" % (vT[5], vT[3]))
        a("v_lshl_add_u32 v%d, v%d, 4, v%d" % (vDK[t], vT[6], vT[5]))
    a("v_and_b32 v%d, 3, v%d" % (vT[6], vT[3]))
    a("v_lshlrev_b32 v%d, 2, v%d" % (vT[6], vT[6]))
    a("v_xor_b32 v%d, v%d, v%d" % (vT[6], vT[6], vT[4]))
    a("v_lshlrev_b32 v%d, 8, v%d" % (vT[5], vT[3]))
    a("v_lshl_add_u32 v%d, v%d, 4, v%d" % (vDV, vT[6], vT[5]))
    a("s_lshl_b32 s%d, s%d, 11" % (sMK, sW))
    a("s_add_u32 s%d, s%d, %d" % (sMV, sMK, VBASE))
    if KBASE:
        a("s_add_u32 s%d, s%d, %d" % (sMK, sMK, KBASE))

    def dma_k(slot):
        return ["s_add_u32 m0, s%d, %d" % (sMK, slot * 16384),
                "buffer_load_dwordx4 v%d, s[%d:%d], s%d offen lds" % (vDK[0], sK, sK + 3, sKoff),
                "buffer_load_dwordx4 v%d, s[%d:%d], s%d offen offset:1024 lds" % (vDK[1], sK, sK + 3, sKoff),
                "s_add_u32 s%d, s%d, 16384" % (sKoff, sKoff)]

    def dma_v(slot):
        return ["s_add_u32 m0, s%d, %d" % (sMV, slot * 16384),
                "buffer_load_dwordx4 v%d, s[%d:%d], s%d offen lds" % (vDV, sV, sV + 3, sVoff),
                "buffer_load_dwordx4 v%d, s[%d:%d], s%d offen offset:1024 lds" % (vDV, sV, sV + 3, sVoff),
                "s_add_u32 s%d, s%d, 16384" % (sVoff, sVoff)]

    if not fuse_q:
        for o in dma_k(0):
            a(o)
        for g in range(3):
            for o in dma_k(g + 1) + dma_v(g):
                a(o)
    a("v_and_b32 v%d, 15, v%d" % (vT[4], vLane))
    a("v_xor_b32 v%d, v%d, v%d" % (vT[4], vT[4], vT[2]))
    a("v_lshlrev_b32 v%d, 4, v%d" % (vT[4], vT[4]))
    a("v_lshl_add_u32 v%d, v%d, 8, v%d" % (vT[4], vT[0], vT[4]))
    if KBASE:
        a("v_add_u32 v%d, %d, v%d" % (vT[4], KBASE, vT[4]))
    for s in range(8):
        a("v_xor_b32 v%d, %d, v%d" % (vKA[s], s << 5, vT[4]))
    a("v_bfe_u32 v%d, v%d, 2, 2" % (vT[3], vLane))
    a("v_and_b32 v%d, 3, v%d" % (vT[4], vLane))
    a("v_bfe_u32 v%d, v%d, 4, 1" % (vT[5], vLane))
    a("v_lshl_add_u32 v%d, v%d, 2, v%d" % (vT[6], vT[2], vT[3]))
    a("v_lshlrev_b32 v%d, 8, v%d" % (vT[6], vT[6]))
    a("v_and_b32 v%d, 1, v%d" % (vT[7], vT[4]))
    a("v_lshl_add_u32 v%d, v%d, 3, v%d" % (vT[6], vT[7], vT[6]))
    a("v_add_u32 v%d, 0x%x, v%d" % (vT[6], VBASE, vT[6]))
    a("v_lshrrev_b32 v%d, 1, v%d" % (vT[4], vT[4]))
    a("v_lshl_add_u32 v%d, v%d, 1, v%d" % (vT[4], vT[5], vT[4]))
    for db in range(4):
        a("v_xor_b32 v%d, %d, v%d" % (vT[5], db, vT[3]))
        a("v_lshl_add_u32 v%d, v%d, 2, v%d" % (vT[5], vT[5], vT[4]))
        a("v_lshl_add_u32 v%d, v%d, 4, v%d" % (vVA[db], vT[5], vT[6]))
    if fuse_q:
        qgemm_phase(a, name, locals())
    for db in range(4):
        for r in range(16):
            a("v_mov_b32 v%d, 0" % (vO[db] + r))
    a("v_mov_b32 v%d, 0xf149f2ca" % vM)
    a("v_mov_b32 v%d, 0" % vL)
    a("v_mov_b32 v%d, 0" % vMc)
    a("v_mov_b32 v%d, 0" % vL2)
    a("v_mov_b32 v%d, 0" % (vL2 + 1))
    a("s_mov_b32 s%d, s%d" % (sC2, sC))
    a("s_mov_b32 s%d, s%d" % (sC2 + 1, sC))

    def k_read(slot, kb, s, f):
        return ["ds_read_b128 v[%d:%d], v%d offset:%d" % (vF[f], vF[f] + 3, vKA[s], slot * 16384 + kb * 8192)]

    def v_read(slot, kb, j, db, f):
        off = slot * 16384 + kb * 8192 + j * 4096
        return ["ds_read_b64_tr_b16 v[%d:%d], v%d offset:%d" % (vF[f], vF[f] + 1, vVA[db], off),
                "ds_read_b64_tr_b16 v[%d:%d], v%d offset:%d" % (vF[f] + 2, vF[f] + 3, vVA[db], off + 2048)]

    def qk_mfma(sb, kb, s, f):
        d = vS[sb][kb]
        c = "0" if s == 0 else "v[%d:%d]" % (d, d + 15)
        return "v_mfma_f32_32x32x16_bf16 v[%d:%d], v[%d:%d], v[%d:%d], %s" % (d, d + 15, vF[f], vF[f] + 3, vQ[s], vQ[s] + 3, c)

    def pv_mfma(kb, j, db, f):
        d = vO[db]
        return "v_mfma_f32_32x32x16_bf16 v[%d:%d], v[%d:%d], v[%d:%d], v[%d:%d]" % (
            d, d + 15, vF[f], vF[f] + 3, vP[kb][j], vP[kb][j] + 3, d, d + 15)

    if fuse_q:
        a("s_waitcnt vmcnt(8)")
        a("s_barrier")
    else:
        a("s_waitcnt vmcnt(12)")
        a("s_barrier")
    seq = [(kb, s) for kb in range(2) for s in range(8)]
    for n in range(min(DIST, 16)):
        for o in k_read(KROT % 4, seq[n][0], seq[n][1], n % RING):
            a(o)
    for n, (kb, s) in enumerate(seq):
        a(qk_mfma(0, kb, s, n % RING))
        if n + DIST < 16:
            for o in k_read(KROT % 4, seq[n + DIST][0], seq[n + DIST][1], (n + DIST) % RING):
                a(o)

    uid = [0]
    sPF = 56
    sPFoff = 68

    def tile_streams(i, with_qk):
        sb = i & 1
        S = vS[sb]
        mf = []
        if with_qk:
            for kb in range(2):
                for s in range(8):
                    mf.append(("k", kb, s, i))
        if PVORD == 0:
            for kb in range(2):
                for j in range(2):
                    for db in range(4):
                        mf.append(("v", kb, j, db, i))
        elif PVORD == 1:
            for kb in range(2):
                for db in range(4):
                    for j in range(2):
                        mf.append(("v", kb, j, db, i))
        else:
            for db in range(4):
                for kb in range(2):
                    for j in range(2):
                        mf.append(("v", kb, j, db, i))
        va = []
        t0, t1 = vT[0], vT[1]
        allS = [S[0] + r for r in range(16)] + [S[1] + r for r in range(16)]
        va.append("v_max3_f32 v%d, v%d, v%d, v%d" % (t0, allS[0], allS[1], allS[2]))
        va.append("v_max3_f32 v%d, v%d, v%d, v%d" % (t1, allS[3], allS[4], allS[5]))
        k = 6
        while k < 32:
            va.append("v_max3_f32 v%d, v%d, v%d, v%d" % (t0, t0, allS[k], allS[k + 1]))
            if k + 3 < 32:
                va.append("v_max3_f32 v%d, v%d, v%d, v%d" % (t1, t1, allS[k + 2], allS[k + 3]))
            k += 4
        va.append("v_max_f32 v%d, v%d, v%d" % (t0, t0, t1))
        va.append("v_mov_b32 v%d, v%d" % (t1, t0))
        va.append("v_permlane32_swap_b32 v%d, v%d" % (t0, t1))
        va.append("v_max_f32 v%d, v%d, v%d" % (t0, t0, t1))
        va.append("v_sub_f32 v%d, v%d, v%d" % (t1, t0, vM))
        va.append("v_cmp_lt_f32 vcc, s%d, v%d" % (sThr, t1))

        def rescale():
            uid[0] += 1
            lab = "%s_nors%d" % (name, uid[0])
            a("s_cbranch_vccz %s" % lab)
            a.cond(True)
            a("v_max_f32 v%d, v%d, v%d" % (t0, t0, vM))
            a("v_sub_f32 v%d, v%d, v%d" % (t1, vM, t0))
            a("v_mul_f32 v%d, s%d, v%d" % (t1, sC, t1))
            a("v_exp_f32 v%d, v%d" % (t1, t1))
            a("v_mov_b32 v%d, v%d" % (vM, t0))
            a("v_mul_f32 v%d, s%d, v%d" % (vMc, sC, t0))
            a("v_mul_f32 v%d, v%d, v%d" % (vL, vL, t1))
            if pk:
                a("v_mov_b32 v%d, v%d" % (vMc2, vMc))
                a("v_mov_b32 v%d, v%d" % (vMc2 + 1, vMc))
                a("v_mul_f32 v%d, v%d, v%d" % (vL2, vL2, t1))
                a("v_mul_f32 v%d, v%d, v%d" % (vL2 + 1, vL2 + 1, t1))
            for db in range(4):
                for r in range(16):
                    a("v_mul_f32 v%d, v%d, v%d" % (vO[db] + r, vO[db] + r, t1))
            a.cond(False)
            a.label(lab)

        va.append(rescale)
        for kb in range(2):
            for j in range(2):
                regs = [S[kb] + 8 * j + e for e in range(8)]
                if pk:
                    for e in range(0, 8, 2):
                        r = regs[e]
                        va.append("v_pk_fma_f32 v[%d:%d], v[%d:%d], s[%d:%d], v[%d:%d] neg_lo:[0,0,1] neg_hi:[0,0,1]" % (
                            r, r + 1, r, r + 1, sC2, sC2 + 1, vMc2, vMc2 + 1))
                        va.append("v_exp_f32 v%d, v%d" % (r, r))
                        va.append("v_exp_f32 v%d, v%d" % (r + 1, r + 1))
                    for e in range(0, 8, 2):
                        r = regs[e]
                        va.append("v_pk_add_f32 v[%d:%d], v[%d:%d], v[%d:%d]" % (vL2, vL2 + 1, vL2, vL2 + 1, r, r + 1))
                        va.append("v_cvt_pk_bf16_f32 v%d, v%d, v%d" % (vP[kb][j] + e // 2, regs[e], regs[e + 1]))
                else:
                    for r in regs:
                        va.append("v_fma_f32 v%d, v%d, s%d, -v%d" % (r, r, sC, vMc))
                        va.append("v_exp_f32 v%d, v%d" % (r, r))
                    for e in range(0, 8, 2):
                        va.append("v_add_f32 v%d, v%d, v%d" % (vT[2 + (e >> 1)], regs[e], regs[e + 1]))
                        va.append("v_cvt_pk_bf16_f32 v%d, v%d, v%d" % (vP[kb][j] + e // 2, regs[e], regs[e + 1]))
                    va.append("v_add_f32 v%d, v%d, v%d" % (vT[2], vT[2], vT[3]))
                    va.append("v_add_f32 v%d, v%d, v%d" % (vT[4], vT[4], vT[5]))
                    va.append("v_add_f32 v%d, v%d, v%d" % (vL, vL, vT[2]))
                    va.append("v_add_f32 v%d, v%d, v%d" % (vL, vL, vT[4]))
                va.append(("mark", kb, j))
        if dbg_novalu:
            va = [x for x in va if isinstance(x, tuple)]
        return mf, va

    def rd(e, f):
        if dbg_noread:
            return []
        if e[0] == "k":
            return k_read((e[3] + 1 + KROT) % 4, e[1], e[2], f)
        return v_read(e[4] % 4, e[1], e[2], e[3], f)

    def mm(e, f):
        if dbg_nomfma:
            return "s_nop 0"
        if dbg_16:
            d = vS[(e[3] & 1) ^ 1][e[1]] if e[0] == "k" else vO[e[3]]
            b = vQ[e[2]] if e[0] == "k" else vP[e[1]][e[2]]
            hh = 8 * (e[2] & 1)
            r = ""
            for x in (d + hh, d + hh + 4):
                c = "0" if (e[0] == "k" and e[2] < 2) else "v[%d:%d]" % (x, x + 3)
                r += "v_mfma_f32_16x16x32_bf16 v[%d:%d], v[%d:%d], v[%d:%d], %s\n" % (x, x + 3, vF[f], vF[f] + 3, b, b + 3, c)
            return r
        if e[0] == "k":
            return qk_mfma((e[3] & 1) ^ 1, e[1], e[2], f)
        return pv_mfma(e[1], e[2], e[3], f)

    def super_iteration(i, loads, last):
        a("s_waitcnt vmcnt(0)")
        if not dbg_nobar:
            a("s_barrier")
        dm = []
        if loads and not dbg_nodma:
            dm = dma_k((i + 3 + KROT) % 4) + dma_v((i + 2) % 4) + dma_k((i + 4 + KROT) % 4) + dma_v((i + 3) % 4)
            if prefetch:
                dm += ["s_mov_b32 m0, s%d" % (sPFoff + 1)]
                for t in range(2):
                    srd = 72 + 4 * ((i // 2) * 2 + t)
                    dm += ["buffer_load_dwordx4 v%d, s[%d:%d], s%d offen lds" % (vPF, srd, srd + 3, sPFoff)]
                if i == 2:
                    dm += ["s_add_u32 s%d, s%d, %d" % (sPFoff, sPFoff, 2048 * 1024)]
        streams = [tile_streams(i, True), tile_streams(i + 1, not last)]
        mf = streams[0][0] + streams[1][0]
        nmf = len(mf)
        for n in range(DIST):
            for o in rd(mf[n], n % RING):
                a(o)
        for o in dm:
            a(o)
        n = 0
        for ti in range(2):
            tmf, va = streams[ti]
            st = {"vi": 0}
            marks = set()

            def emit_va(cnt):
                c = 0
                while st["vi"] < len(va) and c < cnt:
                    x = va[st["vi"]]
                    st["vi"] += 1
                    if callable(x):
                        x()
                    elif isinstance(x, tuple):
                        marks.add((x[1], x[2]))
                        continue
                    else:
                        a(x)
                    c += 1

            emit_va(6)
            for e in tmf:
                if e[0] == "v":
                    while (e[1], e[2]) not in marks:
                        emit_va(1)
                if WG2 and n % 2 == 0 and n + 1 < nmf:
                    cnt = sum(len(rd(mf[x], 0)) for x in range(n + 2, min(n + DIST, nmf)))
                    a("s_waitcnt lgkmcnt(%d)" % cnt)
                a(mm(e, n % RING))
                if n + DIST < nmf:
                    for o in rd(mf[n + DIST], (n + DIST) % RING):
                        a(o)
                emit_va(VPG)
                n += 1
            assert st["vi"] == len(va)

    if prefetch:
        for t, (sl, sz) in enumerate((("wo", 4096 * 1024 * 2), ("wg", 1024 * 3584 * 2), ("wu", 1024 * 3584 * 2), ("wd", 1024 * 3584 * 2))):
            load_ptr(a, 60 + 2 * t, sl)
        a("s_waitcnt lgkmcnt(0)")
        for t, (sl, sz) in enumerate((("wo", 4096 * 1024 * 2), ("wg", 1024 * 3584 * 2), ("wu", 1024 * 3584 * 2), ("wd", 1024 * 3584 * 2))):
            make_srd(a, 72 + 4 * t, 60 + 2 * t, sz)
        a("s_mov_b32 s%d, 0" % sPFoff)
        a("s_lshl_b32 s%d, s%d, 10" % (sPFoff + 1, sW))
        a("s_lshl_b32 s%d, s2, 13" % sT[0])
        a("s_add_u32 s%d, s%d, s%d" % (sT[0], sT[0], sPFoff + 1))
        a("v_lshlrev_b32 v%d, 4, v%d" % (vPF, vLane))
        a("v_add_u32 v%d, s%d, v%d" % (vPF, sT[0], vPF))
    a("s_mov_b32 s%d, 7" % sCnt)
    a.loop_begin("%s_loop" % name)
    super_iteration(0, True, False)
    super_iteration(2, True, False)
    a("s_sub_u32 s%d, s%d, 1" % (sCnt, sCnt))
    a("s_cmp_lg_u32 s%d, 0" % sCnt)
    a.loop_end("s_cbranch_scc1 %s_loop" % name)
    super_iteration(0, True, False)
    super_iteration(2, False, True)

    if pk:
        a("v_add_f32 v%d, v%d, v%d" % (vL, vL2, vL2 + 1))
    a("v_mov_b32 v%d, v%d" % (vT[0], vL))
    a("v_permlane32_swap_b32 v%d, v%d" % (vL, vT[0]))
    a("v_add_f32 v%d, v%d, v%d" % (vL, vL, vT[0]))
    a("v_rcp_f32 v%d, v%d" % (vL, vL))
    for db in range(4):
        e = vS[0][0] + 8 * db
        for d in range(8):
            r0, r1 = vO[db] + 2 * d, vO[db] + 2 * d + 1
            a("v_mul_f32 v%d, v%d, v%d" % (r0, r0, vL))
            a("v_mul_f32 v%d, v%d, v%d" % (r1, r1, vL))
            a("v_cvt_pk_bf16_f32 v%d, v%d, v%d" % (e + d, r0, r1))
        for qp in range(2):
            t = e + 4 * qp
            a("v_permlane32_swap_b32 v%d, v%d" % (t, t + 2))
            a("v_permlane32_swap_b32 v%d, v%d" % (t + 1, t + 3))
            a("buffer_store_dwordx4 v[%d:%d], v%d, s[%d:%d], 0 offen offset:%d" % (t, t + 3, vOut, sOo, sOo + 3, db * 64 + qp * 32))
    if dbg_clock:
        a("s_waitcnt vmcnt(0)")
        a("s_memtime s[94:95]")
        a("s_memrealtime s[96:97]")
        a("s_waitcnt lgkmcnt(0)")
        a("s_sub_u32 s94, s94, s90")
        a("s_sub_u32 s96, s96, s92")
        make_srd(a, 84, 88, 256)
        a("v_mov_b32 v4, s94")
        a("v_mov_b32 v5, s96")
        a("v_mov_b32 v3, 0")
        a("s_cmp_lg_u32 s2, 0")
        a("s_cbranch_scc1 %s_end" % name)
        a("buffer_store_dwordx2 v[4:5], v3, s[84:87], 0 offen")
    a.label("%s_end" % name)
    a("s_endpgm")
    launch = "; @launch kernel=%s grid=(256,1,1) block=(512,1,1) lds=%d" % (name, 163840 if fuse_q else 131072)
    return launch, kernel_header(name) + a.finalize() + kernel_footer(name, NV, 100)
```

```python
from asmlib import Asm

KA = dict(x=0, k=8, v=16, wq=24, wo=32, bx=40, wg=48, wu=56, wd=64, c=72, wmod=80, out=88, dbg=96, ws=104)

WS_MOD = 0x0
WS_H1 = 0x100000
WS_Q = 0x500000
WS_O = 0x1500000
WS_X1 = 0x2500000
WS_H2 = 0x2900000
WS_GU = 0x2D00000
SZ_MOD = 6144 * 4
SZ_ACT = 2048 * 1024 * 2
SZ_Q = 2048 * 4096 * 2
SZ_GU = 2048 * 3584 * 2


def kernel_header(name):
    return (
        ".text\n.globl %s\n.p2align 8\n.type %s,@function\n%s:\n" % (name, name, name)
    )


def kernel_footer(name, vgpr, sgpr=102, agpr=0):
    acc = (vgpr + 3) // 4 * 4
    if agpr:
        vgpr = acc + agpr
    return (
        '.section .rodata,"a"\n.p2align 6\n.amdhsa_kernel %s\n'
        "  .amdhsa_next_free_vgpr %d\n  .amdhsa_next_free_sgpr %d\n  .amdhsa_accum_offset %d\n"
        "  .amdhsa_group_segment_fixed_size 0\n  .amdhsa_kernarg_size 112\n"
        "  .amdhsa_user_sgpr_count 2\n  .amdhsa_user_sgpr_kernarg_segment_ptr 1\n"
        "  .amdhsa_system_sgpr_workgroup_id_x 1\n.end_amdhsa_kernel\n" % (name, vgpr, sgpr, acc)
    )


def load_ptr(a, sreg, slot):
    a("s_load_dwordx2 s[%d:%d], s[0:1], %d" % (sreg, sreg + 1, KA[slot]))


def make_srd(a, srd, ptr, size, off=0):
    if off:
        a("s_add_u32 s%d, s%d, 0x%x" % (srd, ptr, off))
        a("s_addc_u32 s%d, s%d, 0" % (srd + 1, ptr + 1))
    else:
        a("s_mov_b32 s%d, s%d" % (srd, ptr))
        a("s_mov_b32 s%d, s%d" % (srd + 1, ptr + 1))
    a("s_mov_b32 s%d, 0x%x" % (srd + 2, size))
    a("s_mov_b32 s%d, 0x00020000" % (srd + 3))


def round_pair(a, d0, d1, s0, s1, tmp):
    a("v_cvt_pk_bf16_f32 v%d, v%d, v%d" % (tmp, s0, s1))
    a("v_lshlrev_b32 v%d, 16, v%d" % (d0, tmp))
    a("v_and_b32 v%d, 0xffff0000, v%d" % (d1, tmp))


def wave_reduce(a, v, t, op="v_add_f32"):
    a("%s_dpp v%d, v%d, v%d quad_perm:[1,0,3,2] row_mask:0xf bank_mask:0xf" % (op, t, v, v))
    a("%s_dpp v%d, v%d, v%d quad_perm:[2,3,0,1] row_mask:0xf bank_mask:0xf" % (op, v, t, t))
    a("%s_dpp v%d, v%d, v%d row_half_mirror row_mask:0xf bank_mask:0xf" % (op, t, v, v))
    a("%s_dpp v%d, v%d, v%d row_mirror row_mask:0xf bank_mask:0xf" % (op, v, t, t))
    a("ds_swizzle_b32 v%d, v%d offset:0x401F" % (t, v))
    a("%s v%d, v%d, v%d" % (op, v, v, t))
    a("v_mov_b32 v%d, v%d" % (t, v))
    a("v_permlane32_swap_b32 v%d, v%d" % (v, t))
    a("%s v%d, v%d, v%d" % (op, v, v, t))
```

```python
from common import *
import math, struct


def f2u(f):
    return struct.unpack("<I", struct.pack("<f", f))[0]


def qgemm_phase(a, name, L):
    vLane, vT, vQ, vP, vF, vS, vO = L["vLane"], L["vT"], L["vQ"], L["vP"], L["vF"], L["vS"], L["vO"]
    sW, sT, sA, sBq, sKA, sKB, sMA, sMB = L["sW"], L["sT"], L["sA"], L["sBq"], L["sKA"], L["sKB"], L["sMA"], L["sMB"]
    dma_k, dma_v, KROT = L["dma_k"], L["dma_v"], L["KROT"]
    sCnt = L["sCnt"]
    NST, NS, SA, SB = 3, 16, 32768, 16384
    STAGE = SA + SB
    acc = vO
    fA = [vS[0][0], vS[0][0] + 4]
    fB = [[vS[0][0] + 8 + 4 * j for j in range(4)], [vS[0][0] + 24 + 4 * j for j in range(4)]]
    vRA = [[vF[0] + 4 * st + kk for kk in range(4)] for st in range(NST)]
    vRB = [[vF[0] + 12 + 4 * st + j for j in range(4)] for st in range(NST)]
    vDA = [vP[0][0] + t for t in range(4)]
    vDB = [vP[0][0] + 4 + t for t in range(2)]
    make_srd(a, sA, 4, SZ_ACT, WS_H1)
    make_srd(a, sBq, 10, 1024 * 4096 * 2)
    a("s_lshl_b32 s%d, s%d, 5" % (sT[5], sW))
    a("s_sub_u32 s%d, s%d, s%d" % (sT[5], sT[3], sT[5]))
    a("s_lshl_b32 s%d, s%d, 5" % (sT[0], sW))
    a("v_lshrrev_b32 v%d, 3, v%d" % (vT[3], vLane))
    a("v_add_u32 v%d, s%d, v%d" % (vT[3], sT[0], vT[3]))
    a("v_and_b32 v%d, 7, v%d" % (vT[4], vLane))
    for t in range(4):
        a("v_add_u32 v%d, %d, v%d" % (vT[5], t * 8, vT[3]))
        a("v_bfe_u32 v%d, v%d, 1, 3" % (vT[6], vT[5]))
        a("v_xor_b32 v%d, v%d, v%d" % (vT[6], vT[6], vT[4]))
        a("v_add_u32 v%d, s%d, v%d" % (vT[5], sT[5], vT[5]))
        a("v_lshlrev_b32 v%d, 11, v%d" % (vT[5], vT[5]))
        a("v_lshl_add_u32 v%d, v%d, 4, v%d" % (vDA[t], vT[6], vT[5]))
        if t:
            a("v_subrev_u32 v%d, %d, v%d" % (vDA[t], t * 1024, vDA[t]))
    a("s_lshl_b32 s%d, s%d, 3" % (sT[0], sW))
    a("v_lshrrev_b32 v%d, 4, v%d" % (vT[3], vLane))
    a("v_add_u32 v%d, s%d, v%d" % (vT[3], sT[0], vT[3]))
    a("v_and_b32 v%d, 15, v%d" % (vT[4], vLane))
    a("v_and_b32 v%d, 3, v%d" % (vT[6], vT[3]))
    a("v_lshlrev_b32 v%d, 2, v%d" % (vT[6], vT[6]))
    a("v_xor_b32 v%d, v%d, v%d" % (vT[6], vT[6], vT[4]))
    for t in range(2):
        a("v_add_u32 v%d, %d, v%d" % (vT[5], t * 4, vT[3]))
        a("v_lshlrev_b32 v%d, 13, v%d" % (vT[5], vT[5]))
        a("v_lshl_add_u32 v%d, v%d, 4, v%d" % (vDB[t], vT[6], vT[5]))
        a("v_add_u32 v%d, s%d, v%d" % (vDB[t], sT[4], vDB[t]))
        if t:
            a("v_subrev_u32 v%d, %d, v%d" % (vDB[t], t * 1024, vDB[t]))
    a("s_lshl_b32 s%d, s%d, 12" % (sMA, sW))
    a("s_lshl_b32 s%d, s%d, 11" % (sMB, sW))
    a("s_add_u32 s%d, s%d, %d" % (sMB, sMB, SA))
    a("s_mov_b32 s%d, 0" % sKA)
    a("s_mov_b32 s%d, 0" % sKB)

    def dma_ops(slot):
        ops = ["s_add_u32 m0, s%d, %d" % (sMA, slot * STAGE)]
        for t in range(4):
            ops.append("buffer_load_dwordx4 v%d, s[%d:%d], s%d offen offset:%d lds" % (vDA[t], sA, sA + 3, sKA, t * 1024))
        ops.append("s_add_u32 m0, s%d, %d" % (sMB, slot * STAGE))
        for t in range(2):
            ops.append("buffer_load_dwordx4 v%d, s[%d:%d], s%d offen offset:%d lds" % (vDB[t], sBq, sBq + 3, sKB, t * 1024))
        ops.append("s_add_u32 s%d, s%d, 128" % (sKA, sKA))
        ops.append("s_add_u32 s%d, s%d, %d" % (sKB, sKB, 64 * 8192))
        return ops

    for st in range(NST):
        for o in dma_ops(st):
            a(o)
    a("s_lshl_b32 s%d, s%d, 5" % (sT[0], sW))
    a("v_add_u32 v%d, s%d, v%d" % (vT[3], sT[0], vT[0]))
    a("v_bfe_u32 v%d, v%d, 1, 3" % (vT[4], vT[3]))
    a("v_xor_b32 v%d, v%d, v%d" % (vT[4], vT[4], vT[2]))
    a("v_lshlrev_b32 v%d, 4, v%d" % (vT[4], vT[4]))
    a("v_lshl_add_u32 v%d, v%d, 7, v%d" % (vT[4], vT[3], vT[4]))
    for kk in range(4):
        a("v_xor_b32 v%d, %d, v%d" % (vRA[0][kk], kk << 5, vT[4]))
        for st in range(1, NST):
            a("v_add_u32 v%d, %d, v%d" % (vRA[st][kk], st * STAGE, vRA[0][kk]))
    a("v_bfe_u32 v%d, v%d, 2, 2" % (vT[3], vLane))
    a("v_and_b32 v%d, 3, v%d" % (vT[4], vLane))
    a("v_bfe_u32 v%d, v%d, 4, 1" % (vT[5], vLane))
    a("v_lshl_add_u32 v%d, v%d, 3, v%d" % (vT[6], vT[2], vT[3]))
    a("v_lshlrev_b32 v%d, 8, v%d" % (vT[6], vT[6]))
    a("v_and_b32 v%d, 1, v%d" % (vT[7], vT[4]))
    a("v_lshl_add_u32 v%d, v%d, 3, v%d" % (vT[6], vT[7], vT[6]))
    a("v_add_u32 v%d, %d, v%d" % (vT[6], SA, vT[6]))
    a("v_lshrrev_b32 v%d, 1, v%d" % (vT[4], vT[4]))
    a("v_lshl_add_u32 v%d, v%d, 1, v%d" % (vT[4], vT[5], vT[4]))
    for j in range(4):
        a("v_xor_b32 v%d, %d, v%d" % (vT[5], j, vT[3]))
        a("v_lshl_add_u32 v%d, v%d, 2, v%d" % (vT[5], vT[5], vT[4]))
        a("v_lshl_add_u32 v%d, v%d, 4, v%d" % (vRB[0][j], vT[5], vT[6]))
        for st in range(1, NST):
            a("v_add_u32 v%d, %d, v%d" % (vRB[st][j], st * STAGE, vRB[0][j]))
    for j in range(4):
        for r in range(16):
            a("v_mov_b32 v%d, 0" % (acc[j] + r))

    def read_ops(slot, kk, buf):
        ops = ["ds_read_b128 v[%d:%d], v%d" % (fA[buf], fA[buf] + 3, vRA[slot][kk])]
        for j in range(4):
            off = kk * 4096
            ops.append("ds_read_b64_tr_b16 v[%d:%d], v%d offset:%d" % (fB[buf][j], fB[buf][j] + 1, vRB[slot][j], off))
            ops.append("ds_read_b64_tr_b16 v[%d:%d], v%d offset:%d" % (fB[buf][j] + 2, fB[buf][j] + 3, vRB[slot][j], off + 1024))
        return ops

    def mfma_ops(buf):
        return ["v_mfma_f32_32x32x16_bf16 v[%d:%d], v[%d:%d], v[%d:%d], v[%d:%d]" % (
            acc[j], acc[j] + 15, fB[buf][j], fB[buf][j] + 3, fA[buf], fA[buf] + 3, acc[j], acc[j] + 15) for j in range(4)]

    def interleave(mf, others):
        n = len(mf)
        per = (len(others) + n - 1) // n if others else 0
        k = 0
        for m in mf:
            a(m)
            for o in others[k:k + per]:
                a(o)
            k += per
        for o in others[k:]:
            a(o)

    a("s_waitcnt vmcnt(12)")
    a("s_barrier")
    for o in read_ops(0, 0, 0):
        a(o)

    def step(it, in_loop, remain, extra):
        slot = it % NST
        for kk in range(4):
            buf = kk & 1
            if kk < 3:
                interleave(mfma_ops(buf), read_ops(slot, kk + 1, buf ^ 1))
            elif (not in_loop) and it == NS - 1:
                interleave(mfma_ops(buf), [])
            else:
                a("s_waitcnt vmcnt(%d) lgkmcnt(0)" % remain)
                a("s_barrier")
                interleave(mfma_ops(buf), read_ops((it + 1) % NST, 0, buf ^ 1) + extra)

    a("s_mov_b32 s%d, 4" % sCnt)
    a.loop_begin("%s_qloop" % name)
    for u in range(3):
        step(u, True, 6, dma_ops(u))
    a("s_sub_u32 s%d, s%d, 1" % (sCnt, sCnt))
    a("s_cmp_lg_u32 s%d, 0" % sCnt)
    a.loop_end("s_cbranch_scc1 %s_qloop" % name)
    step(12, False, 6, dma_ops(0))
    kl = []
    for t in range(3):
        kl += dma_k((t + KROT) % 4)
    vl = []
    for t in range(2):
        vl += dma_v(t)
    step(13, False, 6, kl)
    step(14, False, 6, vl)
    step(15, False, 0, [])
    for j in range(4):
        for qp in range(2):
            q = vQ[2 * j + qp]
            for d in range(4):
                r = acc[j] + 8 * qp + 2 * d
                a("v_cvt_pk_bf16_f32 v%d, v%d, v%d" % (q + d, r, r + 1))
            a("v_permlane32_swap_b32 v%d, v%d" % (q, q + 2))
            a("v_permlane32_swap_b32 v%d, v%d" % (q + 1, q + 3))


def gen_attn(name="attn_kernel", RING=6, DIST=4, dbg_novalu=False, dbg_noread=False, dbg_nomfma=False, dbg_nodma=False, dbg_nobar=False, dbg_clock=False, dbg_16=False, fuse_q=True, prefetch=True, PFN=1, emu=False, PVORD=0, THR=32.0, VPG=5, pk=False, WG2=False):
    a = Asm()
    nv = [1]

    def alloc(n, al=1):
        nv[0] = (nv[0] + al - 1) // al * al
        r = nv[0]
        nv[0] += n
        return r

    vLane = alloc(1)
    vT = [alloc(1) for _ in range(8)]
    vKA = [alloc(1) for _ in range(8)]
    vVA = [alloc(1) for _ in range(4)]
    vDK = [alloc(1) for _ in range(2)]
    vDV = alloc(1)
    vM, vL, vMc, vOut = alloc(1), alloc(1), alloc(1), alloc(1)
    vPF = alloc(1)
    vMc2 = alloc(2, 2)
    vL2 = alloc(2, 2)
    vQ = [alloc(4, 4) for _ in range(8)]
    vP = [[alloc(4, 4) for _ in range(2)] for _ in range(2)]
    vF = [alloc(4, 4) for _ in range(RING)]
    vS = [[alloc(16, 4) for _ in range(2)] for _ in range(2)]
    vO = [alloc(16, 4) for _ in range(4)]
    NV = nv[0]
    assert NV <= 256, NV

    sQ, sK, sV, sOo = 12, 16, 20, 24
    sW, sKoff, sVoff, sCnt, sMK, sMV, sC, sThr = 28, 29, 30, 31, 32, 33, 34, 35
    sT = [36, 37, 38, 39, 40, 41]
    sC2 = 42
    cexp = (128 ** -0.5) * math.log2(math.e)
    KBASE = 32768 if fuse_q else 0
    VBASE = 98304 if fuse_q else 65536
    KROT = 1 if fuse_q else 0
    sA, sBq, sKA, sKB, sMA, sMB = 44, 48, 52, 53, 54, 55

    a("s_cmp_ge_u32 s2, 256")
    a("s_cbranch_scc1 %s_end" % name)
    load_ptr(a, 4, "ws")
    load_ptr(a, 6, "k")
    load_ptr(a, 8, "v")
    load_ptr(a, 10, "wq")
    if dbg_clock:
        load_ptr(a, 88, "dbg")
        a("s_memtime s[90:91]")
        a("s_memrealtime s[92:93]")
    a("v_and_b32 v%d, 63, v0" % vLane)
    a("v_lshrrev_b32 v%d, 6, v0" % vT[0])
    a("v_readfirstlane_b32 s%d, v%d" % (sW, vT[0]))
    a("s_and_b32 s%d, s2, 7" % sT[0])
    a("s_lshr_b32 s%d, s2, 3" % sT[1])
    a("s_lshr_b32 s%d, s%d, 1" % (sT[2], sT[0]))
    a("s_and_b32 s%d, s%d, 1" % (sT[3], sT[0]))
    a("s_lshl_b32 s%d, s%d, 5" % (sT[3], sT[3]))
    a("s_add_u32 s%d, s%d, s%d" % (sT[3], sT[3], sT[1]))
    a("s_lshr_b32 s%d, s%d, 3" % (sT[4], sT[3]))
    a("s_lshl_b32 s%d, s%d, 3" % (sT[5], sT[2]))
    a("s_add_u32 s%d, s%d, s%d" % (sT[4], sT[4], sT[5]))
    a("s_and_b32 s%d, s%d, 7" % (sT[3], sT[3]))
    a("s_lshl_b32 s%d, s%d, 19" % (sKoff, sT[2]))
    a("s_mov_b32 s%d, s%d" % (sVoff, sKoff))
    a("s_mov_b32 s%d, 0x%x" % (sC, f2u(cexp)))
    a("s_mov_b32 s%d, 0x%x" % (sThr, f2u(THR / cexp)))
    a("s_waitcnt lgkmcnt(0)")
    make_srd(a, sQ, 4, SZ_Q, WS_Q)
    make_srd(a, sOo, 4, SZ_Q, WS_O)
    make_srd(a, sK, 6, 4 * 2048 * 128 * 2)
    make_srd(a, sV, 8, 4 * 2048 * 128 * 2)
    a("s_lshl_b32 s%d, s%d, 8" % (sT[3], sT[3]))
    a("s_lshl_b32 s%d, s%d, 5" % (sT[5], sW))
    a("s_add_u32 s%d, s%d, s%d" % (sT[3], sT[3], sT[5]))
    a("s_lshl_b32 s%d, s%d, 8" % (sT[4], sT[4]))
    a("v_and_b32 v%d, 31, v%d" % (vT[0], vLane))
    a("v_add_u32 v%d, s%d, v%d" % (vT[1], sT[3], vT[0]))
    a("v_lshlrev_b32 v%d, 13, v%d" % (vT[1], vT[1]))
    a("v_add_u32 v%d, s%d, v%d" % (vT[1], sT[4], vT[1]))
    a("v_lshrrev_b32 v%d, 5, v%d" % (vT[2], vLane))
    a("v_lshl_add_u32 v%d, v%d, 4, v%d" % (vOut, vT[2], vT[1]))
    if not fuse_q:
        for s in range(8):
            a("buffer_load_dwordx4 v[%d:%d], v%d, s[%d:%d], 0 offen offset:%d" % (vQ[s], vQ[s] + 3, vOut, sQ, sQ + 3, s * 32))
    a("v_lshrrev_b32 v%d, 4, v%d" % (vT[3], vLane))
    a("s_lshl_b32 s%d, s%d, 3" % (sT[0], sW))
    a("v_add_u32 v%d, s%d, v%d" % (vT[3], sT[0], vT[3]))
    a("v_and_b32 v%d, 15, v%d" % (vT[4], vLane))
    for t in range(2):
        a("v_add_u32 v%d, %d, v%d" % (vT[5], 4 * t, vT[3]))
        a("v_and_b32 v%d, 15, v%d" % (vT[6], vT[5]))
        a("v_xor_b32 v%d, v%d, v%d" % (vT[6], vT[6], vT[4]))
        a("v_lshlrev_b32 v%d, 8, v%d" % (vT[5], vT[3]))
        a("v_lshl_add_u32 v%d, v%d, 4, v%d" % (vDK[t], vT[6], vT[5]))
    a("v_and_b32 v%d, 3, v%d" % (vT[6], vT[3]))
    a("v_lshlrev_b32 v%d, 2, v%d" % (vT[6], vT[6]))
    a("v_xor_b32 v%d, v%d, v%d" % (vT[6], vT[6], vT[4]))
    a("v_lshlrev_b32 v%d, 8, v%d" % (vT[5], vT[3]))
    a("v_lshl_add_u32 v%d, v%d, 4, v%d" % (vDV, vT[6], vT[5]))
    a("s_lshl_b32 s%d, s%d, 11" % (sMK, sW))
    a("s_add_u32 s%d, s%d, %d" % (sMV, sMK, VBASE))
    if KBASE:
        a("s_add_u32 s%d, s%d, %d" % (sMK, sMK, KBASE))

    def dma_k(slot):
        return ["s_add_u32 m0, s%d, %d" % (sMK, slot * 16384),
                "buffer_load_dwordx4 v%d, s[%d:%d], s%d offen lds" % (vDK[0], sK, sK + 3, sKoff),
                "buffer_load_dwordx4 v%d, s[%d:%d], s%d offen offset:1024 lds" % (vDK[1], sK, sK + 3, sKoff),
                "s_add_u32 s%d, s%d, 16384" % (sKoff, sKoff)]

    def dma_v(slot):
        return ["s_add_u32 m0, s%d, %d" % (sMV, slot * 16384),
                "buffer_load_dwordx4 v%d, s[%d:%d], s%d offen lds" % (vDV, sV, sV + 3, sVoff),
                "buffer_load_dwordx4 v%d, s[%d:%d], s%d offen offset:1024 lds" % (vDV, sV, sV + 3, sVoff),
                "s_add_u32 s%d, s%d, 16384" % (sVoff, sVoff)]

    if not fuse_q:
        for o in dma_k(0):
            a(o)
        for g in range(3):
            for o in dma_k(g + 1) + dma_v(g):
                a(o)
    a("v_and_b32 v%d, 15, v%d" % (vT[4], vLane))
    a("v_xor_b32 v%d, v%d, v%d" % (vT[4], vT[4], vT[2]))
    a("v_lshlrev_b32 v%d, 4, v%d" % (vT[4], vT[4]))
    a("v_lshl_add_u32 v%d, v%d, 8, v%d" % (vT[4], vT[0], vT[4]))
    if KBASE:
        a("v_add_u32 v%d, %d, v%d" % (vT[4], KBASE, vT[4]))
    for s in range(8):
        a("v_xor_b32 v%d, %d, v%d" % (vKA[s], s << 5, vT[4]))
    a("v_bfe_u32 v%d, v%d, 2, 2" % (vT[3], vLane))
    a("v_and_b32 v%d, 3, v%d" % (vT[4], vLane))
    a("v_bfe_u32 v%d, v%d, 4, 1" % (vT[5], vLane))
    a("v_lshl_add_u32 v%d, v%d, 2, v%d" % (vT[6], vT[2], vT[3]))
    a("v_lshlrev_b32 v%d, 8, v%d" % (vT[6], vT[6]))
    a("v_and_b32 v%d, 1, v%d" % (vT[7], vT[4]))
    a("v_lshl_add_u32 v%d, v%d, 3, v%d" % (vT[6], vT[7], vT[6]))
    a("v_add_u32 v%d, 0x%x, v%d" % (vT[6], VBASE, vT[6]))
    a("v_lshrrev_b32 v%d, 1, v%d" % (vT[4], vT[4]))
    a("v_lshl_add_u32 v%d, v%d, 1, v%d" % (vT[4], vT[5], vT[4]))
    for db in range(4):
        a("v_xor_b32 v%d, %d, v%d" % (vT[5], db, vT[3]))
        a("v_lshl_add_u32 v%d, v%d, 2, v%d" % (vT[5], vT[5], vT[4]))
        a("v_lshl_add_u32 v%d, v%d, 4, v%d" % (vVA[db], vT[5], vT[6]))
    if fuse_q:
        qgemm_phase(a, name, locals())
    for db in range(4):
        for r in range(16):
            a("v_mov_b32 v%d, 0" % (vO[db] + r))
    a("v_mov_b32 v%d, 0xf149f2ca" % vM)
    a("v_mov_b32 v%d, 0" % vL)
    a("v_mov_b32 v%d, 0" % vMc)
    a("v_mov_b32 v%d, 0" % vL2)
    a("v_mov_b32 v%d, 0" % (vL2 + 1))
    if emu:
        a("s_mov_b32 s%d, 0x%x" % (sC2, f2u(128 ** -0.5)))
        a("s_mov_b32 s%d, 0x%x" % (sC2 + 1, f2u(math.log2(math.e))))
    else:
        a("s_mov_b32 s%d, s%d" % (sC2, sC))
        a("s_mov_b32 s%d, s%d" % (sC2 + 1, sC))

    def k_read(slot, kb, s, f):
        return ["ds_read_b128 v[%d:%d], v%d offset:%d" % (vF[f], vF[f] + 3, vKA[s], slot * 16384 + kb * 8192)]

    def v_read(slot, kb, j, db, f):
        off = slot * 16384 + kb * 8192 + j * 4096
        return ["ds_read_b64_tr_b16 v[%d:%d], v%d offset:%d" % (vF[f], vF[f] + 1, vVA[db], off),
                "ds_read_b64_tr_b16 v[%d:%d], v%d offset:%d" % (vF[f] + 2, vF[f] + 3, vVA[db], off + 2048)]

    def qk_mfma(sb, kb, s, f):
        d = vS[sb][kb]
        c = "0" if s == 0 else "v[%d:%d]" % (d, d + 15)
        return "v_mfma_f32_32x32x16_bf16 v[%d:%d], v[%d:%d], v[%d:%d], %s" % (d, d + 15, vF[f], vF[f] + 3, vQ[s], vQ[s] + 3, c)

    def pv_mfma(kb, j, db, f):
        d = vO[db]
        return "v_mfma_f32_32x32x16_bf16 v[%d:%d], v[%d:%d], v[%d:%d], v[%d:%d]" % (
            d, d + 15, vF[f], vF[f] + 3, vP[kb][j], vP[kb][j] + 3, d, d + 15)

    if fuse_q:
        a("s_waitcnt vmcnt(8)")
        a("s_barrier")
    else:
        a("s_waitcnt vmcnt(12)")
        a("s_barrier")
    seq = [(kb, s) for kb in range(2) for s in range(8)]
    for n in range(min(DIST, 16)):
        for o in k_read(KROT % 4, seq[n][0], seq[n][1], n % RING):
            a(o)
    for n, (kb, s) in enumerate(seq):
        a(qk_mfma(0, kb, s, n % RING))
        if n + DIST < 16:
            for o in k_read(KROT % 4, seq[n + DIST][0], seq[n + DIST][1], (n + DIST) % RING):
                a(o)

    uid = [0]
    sPF = 56
    sPFoff = 68

    def tile_streams(i, with_qk):
        sb = i & 1
        S = vS[sb]
        mf = []
        if with_qk:
            for kb in range(2):
                for s in range(8):
                    mf.append(("k", kb, s, i))
        if PVORD == 0:
            for kb in range(2):
                for j in range(2):
                    for db in range(4):
                        mf.append(("v", kb, j, db, i))
        elif PVORD == 1:
            for kb in range(2):
                for db in range(4):
                    for j in range(2):
                        mf.append(("v", kb, j, db, i))
        else:
            for db in range(4):
                for kb in range(2):
                    for j in range(2):
                        mf.append(("v", kb, j, db, i))
        va = []
        t0, t1 = vT[0], vT[1]
        allS = [S[0] + r for r in range(16)] + [S[1] + r for r in range(16)]
        va.append("v_max3_f32 v%d, v%d, v%d, v%d" % (t0, allS[0], allS[1], allS[2]))
        va.append("v_max3_f32 v%d, v%d, v%d, v%d" % (t1, allS[3], allS[4], allS[5]))
        k = 6
        while k < 32:
            va.append("v_max3_f32 v%d, v%d, v%d, v%d" % (t0, t0, allS[k], allS[k + 1]))
            if k + 3 < 32:
                va.append("v_max3_f32 v%d, v%d, v%d, v%d" % (t1, t1, allS[k + 2], allS[k + 3]))
            k += 4
        va.append("v_max_f32 v%d, v%d, v%d" % (t0, t0, t1))
        va.append("v_mov_b32 v%d, v%d" % (t1, t0))
        va.append("v_permlane32_swap_b32 v%d, v%d" % (t0, t1))
        va.append("v_max_f32 v%d, v%d, v%d" % (t0, t0, t1))
        va.append("v_sub_f32 v%d, v%d, v%d" % (t1, t0, vM))
        va.append("v_cmp_lt_f32 vcc, s%d, v%d" % (sThr, t1))

        def rescale():
            uid[0] += 1
            lab = "%s_nors%d" % (name, uid[0])
            a("s_cbranch_vccz %s" % lab)
            a.cond(True)
            a("v_max_f32 v%d, v%d, v%d" % (t0, t0, vM))
            a("v_sub_f32 v%d, v%d, v%d" % (t1, vM, t0))
            a("v_mul_f32 v%d, s%d, v%d" % (t1, sC, t1))
            a("v_exp_f32 v%d, v%d" % (t1, t1))
            a("v_mov_b32 v%d, v%d" % (vM, t0))
            a("v_mul_f32 v%d, s%d, v%d" % (vMc, sC, t0))
            a("v_mul_f32 v%d, v%d, v%d" % (vL, vL, t1))
            if pk:
                a("v_mov_b32 v%d, v%d" % (vMc2, vMc))
                a("v_mov_b32 v%d, v%d" % (vMc2 + 1, vMc))
                a("v_mul_f32 v%d, v%d, v%d" % (vL2, vL2, t1))
                a("v_mul_f32 v%d, v%d, v%d" % (vL2 + 1, vL2 + 1, t1))
            for db in range(4):
                for r in range(16):
                    a("v_mul_f32 v%d, v%d, v%d" % (vO[db] + r, vO[db] + r, t1))
            a.cond(False)
            a.label(lab)

        va.append(rescale)
        for kb in range(2):
            for j in range(2):
                regs = [S[kb] + 8 * j + e for e in range(8)]
                if pk:
                    for e in range(0, 8, 2):
                        r = regs[e]
                        va.append("v_pk_fma_f32 v[%d:%d], v[%d:%d], s[%d:%d], v[%d:%d] neg_lo:[0,0,1] neg_hi:[0,0,1]" % (
                            r, r + 1, r, r + 1, sC2, sC2 + 1, vMc2, vMc2 + 1))
                        va.append("v_exp_f32 v%d, v%d" % (r, r))
                        va.append("v_exp_f32 v%d, v%d" % (r + 1, r + 1))
                    for e in range(0, 8, 2):
                        r = regs[e]
                        va.append("v_pk_add_f32 v[%d:%d], v[%d:%d], v[%d:%d]" % (vL2, vL2 + 1, vL2, vL2 + 1, r, r + 1))
                        va.append("v_cvt_pk_bf16_f32 v%d, v%d, v%d" % (vP[kb][j] + e // 2, regs[e], regs[e + 1]))
                else:
                    if emu:
                        for e in range(0, 8, 2):
                            r0, r1, t = regs[e], regs[e + 1], vT[6 + ((e >> 1) & 1)]
                            va.append("v_cvt_pk_bf16_f32 v%d, v%d, v%d" % (t, r0, r1))
                            va.append("v_lshlrev_b32 v%d, 16, v%d" % (r0, t))
                            va.append("v_and_b32 v%d, 0xffff0000, v%d" % (r1, t))
                            va.append("v_mul_f32 v%d, s%d, v%d" % (r0, sC2, r0))
                            va.append("v_mul_f32 v%d, s%d, v%d" % (r1, sC2, r1))
                            va.append("v_cvt_pk_bf16_f32 v%d, v%d, v%d" % (t, r0, r1))
                            va.append("v_lshlrev_b32 v%d, 16, v%d" % (r0, t))
                            va.append("v_and_b32 v%d, 0xffff0000, v%d" % (r1, t))
                            for r in (r0, r1):
                                va.append("v_fma_f32 v%d, v%d, s%d, -v%d" % (r, r, sC2 + 1, vMc))
                                va.append("v_exp_f32 v%d, v%d" % (r, r))
                    else:
                        for r in regs:
                            va.append("v_fma_f32 v%d, v%d, s%d, -v%d" % (r, r, sC, vMc))
                            va.append("v_exp_f32 v%d, v%d" % (r, r))
                    for e in range(0, 8, 2):
                        va.append("v_add_f32 v%d, v%d, v%d" % (vT[2 + (e >> 1)], regs[e], regs[e + 1]))
                        va.append("v_cvt_pk_bf16_f32 v%d, v%d, v%d" % (vP[kb][j] + e // 2, regs[e], regs[e + 1]))
                    va.append("v_add_f32 v%d, v%d, v%d" % (vT[2], vT[2], vT[3]))
                    va.append("v_add_f32 v%d, v%d, v%d" % (vT[4], vT[4], vT[5]))
                    va.append("v_add_f32 v%d, v%d, v%d" % (vL, vL, vT[2]))
                    va.append("v_add_f32 v%d, v%d, v%d" % (vL, vL, vT[4]))
                va.append(("mark", kb, j))
        if dbg_novalu:
            va = [x for x in va if isinstance(x, tuple)]
        return mf, va

    def rd(e, f):
        if dbg_noread:
            return []
        if e[0] == "k":
            return k_read((e[3] + 1 + KROT) % 4, e[1], e[2], f)
        return v_read(e[4] % 4, e[1], e[2], e[3], f)

    def mm(e, f):
        if dbg_nomfma:
            return "s_nop 0"
        if dbg_16:
            d = vS[(e[3] & 1) ^ 1][e[1]] if e[0] == "k" else vO[e[3]]
            b = vQ[e[2]] if e[0] == "k" else vP[e[1]][e[2]]
            hh = 8 * (e[2] & 1)
            r = ""
            for x in (d + hh, d + hh + 4):
                c = "0" if (e[0] == "k" and e[2] < 2) else "v[%d:%d]" % (x, x + 3)
                r += "v_mfma_f32_16x16x32_bf16 v[%d:%d], v[%d:%d], v[%d:%d], %s\n" % (x, x + 3, vF[f], vF[f] + 3, b, b + 3, c)
            return r
        if e[0] == "k":
            return qk_mfma((e[3] & 1) ^ 1, e[1], e[2], f)
        return pv_mfma(e[1], e[2], e[3], f)

    def super_iteration(i, loads, last):
        a("s_waitcnt vmcnt(0)")
        if not dbg_nobar:
            a("s_barrier")
        dm = []
        if loads and not dbg_nodma:
            dm = dma_k((i + 3 + KROT) % 4) + dma_v((i + 2) % 4) + dma_k((i + 4 + KROT) % 4) + dma_v((i + 3) % 4)
            if prefetch:
                dm += ["s_mov_b32 m0, s%d" % (sPFoff + 1)]
                for t in range(2):
                    srd = 72 + 4 * ((i // 2) * 2 + t)
                    dm += ["buffer_load_dwordx4 v%d, s[%d:%d], s%d offen lds" % (vPF, srd, srd + 3, sPFoff)]
                if i == 2:
                    dm += ["s_add_u32 s%d, s%d, %d" % (sPFoff, sPFoff, 2048 * 1024)]
        streams = [tile_streams(i, True), tile_streams(i + 1, not last)]
        mf = streams[0][0] + streams[1][0]
        nmf = len(mf)
        for n in range(DIST):
            for o in rd(mf[n], n % RING):
                a(o)
        for o in dm:
            a(o)
        n = 0
        for ti in range(2):
            tmf, va = streams[ti]
            st = {"vi": 0}
            marks = set()

            def emit_va(cnt):
                c = 0
                while st["vi"] < len(va) and c < cnt:
                    x = va[st["vi"]]
                    st["vi"] += 1
                    if callable(x):
                        x()
                    elif isinstance(x, tuple):
                        marks.add((x[1], x[2]))
                        continue
                    else:
                        a(x)
                    c += 1

            emit_va(6)
            for e in tmf:
                if e[0] == "v":
                    while (e[1], e[2]) not in marks:
                        emit_va(1)
                if WG2 and n % 2 == 0 and n + 1 < nmf:
                    cnt = sum(len(rd(mf[x], 0)) for x in range(n + 2, min(n + DIST, nmf)))
                    a("s_waitcnt lgkmcnt(%d)" % cnt)
                a(mm(e, n % RING))
                if n + DIST < nmf:
                    for o in rd(mf[n + DIST], (n + DIST) % RING):
                        a(o)
                emit_va(VPG)
                n += 1
            assert st["vi"] == len(va)

    if prefetch:
        for t, (sl, sz) in enumerate((("wo", 4096 * 1024 * 2), ("wg", 1024 * 3584 * 2), ("wu", 1024 * 3584 * 2), ("wd", 1024 * 3584 * 2))):
            load_ptr(a, 60 + 2 * t, sl)
        a("s_waitcnt lgkmcnt(0)")
        for t, (sl, sz) in enumerate((("wo", 4096 * 1024 * 2), ("wg", 1024 * 3584 * 2), ("wu", 1024 * 3584 * 2), ("wd", 1024 * 3584 * 2))):
            make_srd(a, 72 + 4 * t, 60 + 2 * t, sz)
        a("s_mov_b32 s%d, 0" % sPFoff)
        a("s_lshl_b32 s%d, s%d, 10" % (sPFoff + 1, sW))
        a("s_lshl_b32 s%d, s2, 13" % sT[0])
        a("s_add_u32 s%d, s%d, s%d" % (sT[0], sT[0], sPFoff + 1))
        a("v_lshlrev_b32 v%d, 4, v%d" % (vPF, vLane))
        a("v_add_u32 v%d, s%d, v%d" % (vPF, sT[0], vPF))
    a("s_mov_b32 s%d, 7" % sCnt)
    a.loop_begin("%s_loop" % name)
    super_iteration(0, True, False)
    super_iteration(2, True, False)
    a("s_sub_u32 s%d, s%d, 1" % (sCnt, sCnt))
    a("s_cmp_lg_u32 s%d, 0" % sCnt)
    a.loop_end("s_cbranch_scc1 %s_loop" % name)
    super_iteration(0, True, False)
    super_iteration(2, False, True)

    if pk:
        a("v_add_f32 v%d, v%d, v%d" % (vL, vL2, vL2 + 1))
    a("v_mov_b32 v%d, v%d" % (vT[0], vL))
    a("v_permlane32_swap_b32 v%d, v%d" % (vL, vT[0]))
    a("v_add_f32 v%d, v%d, v%d" % (vL, vL, vT[0]))
    a("v_rcp_f32 v%d, v%d" % (vL, vL))
    for db in range(4):
        e = vS[0][0] + 8 * db
        for d in range(8):
            r0, r1 = vO[db] + 2 * d, vO[db] + 2 * d + 1
            a("v_mul_f32 v%d, v%d, v%d" % (r0, r0, vL))
            a("v_mul_f32 v%d, v%d, v%d" % (r1, r1, vL))
            a("v_cvt_pk_bf16_f32 v%d, v%d, v%d" % (e + d, r0, r1))
        for qp in range(2):
            t = e + 4 * qp
            a("v_permlane32_swap_b32 v%d, v%d" % (t, t + 2))
            a("v_permlane32_swap_b32 v%d, v%d" % (t + 1, t + 3))
            a("buffer_store_dwordx4 v[%d:%d], v%d, s[%d:%d], 0 offen offset:%d" % (t, t + 3, vOut, sOo, sOo + 3, db * 64 + qp * 32))
    if dbg_clock:
        a("s_waitcnt vmcnt(0)")
        a("s_memtime s[94:95]")
        a("s_memrealtime s[96:97]")
        a("s_waitcnt lgkmcnt(0)")
        a("s_sub_u32 s94, s94, s90")
        a("s_sub_u32 s96, s96, s92")
        make_srd(a, 84, 88, 256)
        a("v_mov_b32 v4, s94")
        a("v_mov_b32 v5, s96")
        a("v_mov_b32 v3, 0")
        a("s_cmp_lg_u32 s2, 0")
        a("s_cbranch_scc1 %s_end" % name)
        a("buffer_store_dwordx2 v[4:5], v3, s[84:87], 0 offen")
    a.label("%s_end" % name)
    a("s_endpgm")
    launch = "; @launch kernel=%s grid=(256,1,1) block=(512,1,1) lds=%d" % (name, 163840 if fuse_q else 131072)
    return launch, kernel_header(name) + a.finalize() + kernel_footer(name, NV, 100)
```

```python
from common import *


def lg2(x):
    n = x.bit_length() - 1
    assert 1 << n == x, x
    return n


def gen_gemm(name, a_ws, K, bslots, N, BM, PW, BK, NST, WM, WN, epi, out_ws, ldc, GM, GN, xm,
             resid_ws=None, gate_chunk=None, dbg_nodma=False, dbg_nomfma=False, dbg_noread=False, lda=None, dbg_noA=False, dbg_noB=False, dbg_maxwg=None, dbg_16=False, blockedA=False):
    lda = lda or K
    NP = len(bslots)
    NW = WM * WN
    TM = BM // WM
    TNp = PW // WN
    IM = TM // 32
    JP = TNp // 32
    J = JP * NP
    NKK = BK // 16
    NS = K // BK
    SA = BM * BK * 2
    SB = BK * PW * 2
    STAGE = SA + NP * SB
    LDS = STAGE * NST
    assert LDS <= 160 * 1024
    nAw = SA // 1024 // NW
    nBw = SB // 1024 // NW
    assert nAw * 1024 * NW == SA and nBw * 1024 * NW == SB and nAw <= 4 and nBw <= 4
    L = nAw + NP * nBw
    CPR = BK // 8
    RPI = 1024 // (BK * 2)
    RPB = 16 // CPR
    CPRb = PW // 8
    RPIb = 1024 // (PW * 2)
    RB = max(1, 128 // PW)
    SPR = PW // 32
    gmask = min(SPR, 4) - 1
    NWG = GM * GN

    a = Asm()
    nv = [1]

    def alloc(n, al=1):
        nv[0] = (nv[0] + al - 1) // al * al
        r = nv[0]
        nv[0] += n
        return r

    vLane = alloc(1)
    vT = [alloc(1) for _ in range(6)]
    vDA = [alloc(1) for _ in range(nAw)]
    vDB = [alloc(1) for _ in range(nBw)]
    vRA = [[alloc(1) for _ in range(NKK)] for _ in range(NST)]
    vRB = [[alloc(1) for _ in range(JP)] for _ in range(NST)]
    vC = alloc(1)
    vX = alloc(1)
    vG = alloc(1)
    fA = [[alloc(4, 4) for _ in range(IM)] for _ in range(2)]
    fB = [[alloc(4, 4) for _ in range(J)] for _ in range(2)]
    vE = alloc(32, 4)
    pre = epi == "resid" and IM * J <= 2
    if pre:
        vGp = [alloc(16, 4) for _ in range(J)]
        vXp = [[alloc(8, 4) for _ in range(J)] for _ in range(IM)]
    acc = [[alloc(16, 4) for _ in range(J)] for _ in range(IM)]
    NV = nv[0]
    assert NV <= 256, NV

    sA, sB, sC, sX, sMod = 12, [16, 20], 24, 28, 32
    sM, sN, sW, sKA, sKB, sCnt, sMA = 36, 37, 38, 39, 40, 41, 42
    sMB = [43, 44]
    sT = [45, 46, 47, 48, 49, 50]

    a("s_cmp_ge_u32 s2, %d" % (NWG if dbg_maxwg is None else dbg_maxwg))
    a("s_cbranch_scc1 %s_end" % name)
    load_ptr(a, 4, "ws")
    for p, sl in enumerate(bslots):
        load_ptr(a, 6 + 2 * p, sl)
    load_ptr(a, 10, "x")
    load_ptr(a, 52, "out")
    a("v_and_b32 v%d, 63, v0" % vLane)
    a("v_lshrrev_b32 v%d, 6, v0" % vT[0])
    a("v_readfirstlane_b32 s%d, v%d" % (sW, vT[0]))
    gmx = GM // xm
    gnx = GN // (8 // xm)
    a("s_and_b32 s%d, s2, 7" % sT[0])
    a("s_lshr_b32 s%d, s2, 3" % sT[1])
    a("s_and_b32 s%d, s%d, %d" % (sT[2], sT[0], xm - 1))
    a("s_lshr_b32 s%d, s%d, %d" % (sT[3], sT[0], lg2(xm)))
    a("s_and_b32 s%d, s%d, %d" % (sT[4], sT[1], gmx - 1))
    a("s_lshr_b32 s%d, s%d, %d" % (sT[5], sT[1], lg2(gmx)))
    a("s_mul_i32 s%d, s%d, %d" % (sT[2], sT[2], gmx))
    a("s_add_u32 s%d, s%d, s%d" % (sM, sT[2], sT[4]))
    a("s_mul_i32 s%d, s%d, %d" % (sT[3], sT[3], gnx))
    a("s_add_u32 s%d, s%d, s%d" % (sN, sT[3], sT[5]))
    a("s_mul_i32 s%d, s%d, %d" % (sM, sM, BM))
    a("s_mul_i32 s%d, s%d, %d" % (sN, sN, PW))
    a("s_waitcnt lgkmcnt(0)")
    make_srd(a, sA, 4, 2048 * lda * 2, a_ws)
    for p in range(NP):
        make_srd(a, sB[p], 6 + 2 * p, K * N * 2)
    if out_ws is None:
        make_srd(a, sC, 52, 2048 * ldc * 2)
    else:
        make_srd(a, sC, 4, 2048 * ldc * 2, out_ws)
    if epi == "resid":
        if resid_ws is None:
            make_srd(a, sX, 10, SZ_ACT)
        else:
            make_srd(a, sX, 4, SZ_ACT, resid_ws)
        make_srd(a, sMod, 4, SZ_MOD, WS_MOD)

    a("s_mul_i32 s%d, s%d, %d" % (sT[0], sW, nAw * RPI))
    a("s_mov_b32 s%d, %d" % (sT[1], lda * 2))
    a("v_lshrrev_b32 v%d, %d, v%d" % (vT[0], lg2(CPR), vLane))
    a("v_add_u32 v%d, s%d, v%d" % (vT[0], sT[0], vT[0]))
    a("v_and_b32 v%d, %d, v%d" % (vT[1], CPR - 1, vLane))
    for t in range(nAw):
        a("v_add_u32 v%d, %d, v%d" % (vT[2], t * RPI, vT[0]))
        a("v_bfe_u32 v%d, v%d, %d, %d" % (vT[3], vT[2], lg2(RPB), lg2(CPR)))
        a("v_xor_b32 v%d, v%d, v%d" % (vT[3], vT[3], vT[1]))
        if blockedA:
            a("v_lshlrev_b32 v%d, %d, v%d" % (vT[2], lg2(BK * 2), vT[2]))
            a("s_mul_i32 s%d, s%d, %d" % (sT[2], sM, lda * 2))
            a("v_add_u32 v%d, s%d, v%d" % (vT[2], sT[2], vT[2]))
        else:
            a("v_add_u32 v%d, s%d, v%d" % (vT[2], sM, vT[2]))
            a("v_mul_lo_u32 v%d, v%d, s%d" % (vT[2], vT[2], sT[1]))
        a("v_lshl_add_u32 v%d, v%d, 4, v%d" % (vDA[t], vT[3], vT[2]))
        if t:
            a("v_subrev_u32 v%d, %d, v%d" % (vDA[t], t * 1024, vDA[t]))
    a("s_mul_i32 s%d, s%d, %d" % (sT[0], sW, nBw * RPIb))
    a("s_mov_b32 s%d, %d" % (sT[1], N * 2))
    a("s_lshl_b32 s%d, s%d, 1" % (sT[2], sN))
    a("v_lshrrev_b32 v%d, %d, v%d" % (vT[0], lg2(CPRb), vLane))
    a("v_add_u32 v%d, s%d, v%d" % (vT[0], sT[0], vT[0]))
    a("v_and_b32 v%d, %d, v%d" % (vT[1], CPRb - 1, vLane))
    for t in range(nBw):
        a("v_add_u32 v%d, %d, v%d" % (vT[2], t * RPIb, vT[0]))
        a("v_lshrrev_b32 v%d, %d, v%d" % (vT[3], lg2(RB), vT[2]))
        a("v_and_b32 v%d, %d, v%d" % (vT[3], gmask, vT[3]))
        a("v_lshlrev_b32 v%d, 2, v%d" % (vT[3], vT[3]))
        a("v_xor_b32 v%d, v%d, v%d" % (vT[3], vT[3], vT[1]))
        a("v_mul_lo_u32 v%d, v%d, s%d" % (vT[2], vT[2], sT[1]))
        a("v_lshl_add_u32 v%d, v%d, 4, v%d" % (vDB[t], vT[3], vT[2]))
        a("v_add_u32 v%d, s%d, v%d" % (vDB[t], sT[2], vDB[t]))
        if t:
            a("v_subrev_u32 v%d, %d, v%d" % (vDB[t], t * 1024, vDB[t]))
    a("s_mul_i32 s%d, s%d, %d" % (sMA, sW, nAw * 1024))
    for p in range(NP):
        a("s_mul_i32 s%d, s%d, %d" % (sMB[p], sW, nBw * 1024))
        a("s_add_u32 s%d, s%d, %d" % (sMB[p], sMB[p], SA + p * SB))
    a("s_mov_b32 s%d, 0" % sKA)
    a("s_mov_b32 s%d, 0" % sKB)

    def dma_ops(slot):
        ops = []
        ops.append("s_add_u32 m0, s%d, %d" % (sMA, slot * STAGE))
        for t in range(nAw):
            ops.append("buffer_load_dwordx4 v%d, s[%d:%d], s%d offen offset:%d lds" % (vDA[t], sA, sA + 3, sKA, t * 1024))
        for p in range(NP):
            ops.append("s_add_u32 m0, s%d, %d" % (sMB[p], slot * STAGE))
            for t in range(nBw):
                ops.append("buffer_load_dwordx4 v%d, s[%d:%d], s%d offen offset:%d lds" % (vDB[t], sB[p], sB[p] + 3, sKB, t * 1024))
        if dbg_nodma:
            ops = [o for o in ops if not o.startswith("buffer_load")]
        if dbg_noA:
            ops = [o for o in ops if not (o.startswith("buffer_load") and "s[%d:" % sA in o)]
        if dbg_noB:
            ops = [o for o in ops if not (o.startswith("buffer_load") and "s[%d:" % sA not in o)]
        ops.append("s_add_u32 s%d, s%d, %d" % (sKA, sKA, BM * BK * 2 if blockedA else BK * 2))
        ops.append("s_add_u32 s%d, s%d, %d" % (sKB, sKB, BK * N * 2))
        return ops

    for st in range(NST):
        for o in dma_ops(st):
            a(o)

    a("s_lshr_b32 s%d, s%d, %d" % (sT[0], sW, lg2(WN)))
    a("s_and_b32 s%d, s%d, %d" % (sT[1], sW, WN - 1))
    a("s_mul_i32 s%d, s%d, %d" % (sT[2], sT[0], TM))
    a("s_mul_i32 s%d, s%d, %d" % (sT[3], sT[1], TNp))
    a("v_and_b32 v%d, 31, v%d" % (vT[0], vLane))
    a("v_add_u32 v%d, s%d, v%d" % (vT[0], sT[2], vT[0]))
    a("v_lshrrev_b32 v%d, 5, v%d" % (vT[1], vLane))
    a("v_bfe_u32 v%d, v%d, %d, %d" % (vT[2], vT[0], lg2(RPB), lg2(CPR)))
    a("v_xor_b32 v%d, v%d, v%d" % (vT[2], vT[2], vT[1]))
    a("v_lshlrev_b32 v%d, 4, v%d" % (vT[2], vT[2]))
    a("v_lshl_add_u32 v%d, v%d, %d, v%d" % (vT[2], vT[0], lg2(BK * 2), vT[2]))
    for kk in range(NKK):
        a("v_xor_b32 v%d, %d, v%d" % (vRA[0][kk], kk << 5, vT[2]))
        for st in range(1, NST):
            a("v_add_u32 v%d, %d, v%d" % (vRA[st][kk], st * STAGE, vRA[0][kk]))
    a("v_add_u32 v%d, s%d, v%d" % (vT[0], sM, vT[0]))
    a("s_add_u32 s%d, s%d, s%d" % (sT[3], sT[3], sN))
    a("s_lshl_b32 s%d, s%d, 1" % (sT[4], sT[3]))
    a("s_mov_b32 s%d, %d" % (sT[5], ldc * 2))
    a("v_mul_lo_u32 v%d, v%d, s%d" % (vC, vT[0], sT[5]))
    a("v_add_u32 v%d, s%d, v%d" % (vC, sT[4], vC))
    a("v_lshl_add_u32 v%d, v%d, 4, v%d" % (vC, vT[1], vC))
    if epi == "resid":
        a("v_lshlrev_b32 v%d, 11, v%d" % (vX, vT[0]))
        a("v_add_u32 v%d, s%d, v%d" % (vX, sT[4], vX))
        a("v_lshl_add_u32 v%d, v%d, 3, v%d" % (vX, vT[1], vX))
        a("s_lshl_b32 s%d, s%d, 2" % (sT[4], sT[3]))
        a("s_add_u32 s%d, s%d, %d" % (sT[4], sT[4], gate_chunk * 4096))
        a("v_lshlrev_b32 v%d, 4, v%d" % (vG, vT[1]))
        a("v_add_u32 v%d, s%d, v%d" % (vG, sT[4], vG))
    npre = 0
    if pre:
        a("s_mov_b32 s%d, 0" % sT[5])
        a("s_mov_b32 s%d, %d" % (58, 32 * 2048))
        for j in range(J):
            for q in range(4):
                a("buffer_load_dwordx4 v[%d:%d], v%d, s[%d:%d], 0 offen offset:%d" % (
                    vGp[j] + 4 * q, vGp[j] + 4 * q + 3, vG, sMod, sMod + 3, j * 128 + q * 32))
                npre += 1
            for i in range(IM):
                for q in range(4):
                    a("buffer_load_dwordx2 v[%d:%d], v%d, s[%d:%d], s%d offen offset:%d" % (
                        vXp[i][j] + 2 * q, vXp[i][j] + 2 * q + 1, vX, sX, sX + 3, 58 if i else sT[5], j * 64 + q * 16))
                    npre += 1
    a("s_mul_i32 s%d, s%d, %d" % (sT[3], sT[1], TNp // 8))
    a("v_bfe_u32 v%d, v%d, 2, 2" % (vT[0], vLane))
    a("v_and_b32 v%d, 3, v%d" % (vT[1], vLane))
    a("v_bfe_u32 v%d, v%d, 4, 1" % (vT[2], vLane))
    a("v_lshrrev_b32 v%d, 5, v%d" % (vT[3], vLane))
    a("v_lshl_add_u32 v%d, v%d, 3, v%d" % (vT[3], vT[3], vT[0]))
    a("v_lshlrev_b32 v%d, %d, v%d" % (vT[3], lg2(PW * 2), vT[3]))
    a("v_and_b32 v%d, 1, v%d" % (vT[4], vT[1]))
    a("v_lshl_add_u32 v%d, v%d, 3, v%d" % (vT[3], vT[4], vT[3]))
    a("v_add_u32 v%d, %d, v%d" % (vT[3], SA, vT[3]))
    a("v_lshrrev_b32 v%d, 1, v%d" % (vT[1], vT[1]))
    a("v_lshl_add_u32 v%d, v%d, 1, v%d" % (vT[1], vT[2], vT[1]))
    a("v_add_u32 v%d, s%d, v%d" % (vT[1], sT[3], vT[1]))
    a("v_lshrrev_b32 v%d, %d, v%d" % (vT[0], lg2(RB), vT[0]))
    a("v_and_b32 v%d, %d, v%d" % (vT[0], gmask, vT[0]))
    a("v_lshlrev_b32 v%d, 2, v%d" % (vT[0], vT[0]))
    for j in range(JP):
        a("v_add_u32 v%d, %d, v%d" % (vT[2], j * 4, vT[1]))
        a("v_xor_b32 v%d, v%d, v%d" % (vT[2], vT[2], vT[0]))
        a("v_lshl_add_u32 v%d, v%d, 4, v%d" % (vRB[0][j], vT[2], vT[3]))
        for st in range(1, NST):
            a("v_add_u32 v%d, %d, v%d" % (vRB[st][j], st * STAGE, vRB[0][j]))
    for i in range(IM):
        for j in range(J):
            for r in range(16):
                a("v_mov_b32 v%d, 0" % (acc[i][j] + r))

    def read_ops(slot, kk, buf):
        ops = []
        for i in range(IM):
            ops.append("ds_read_b128 v[%d:%d], v%d offset:%d" % (fA[buf][i], fA[buf][i] + 3, vRA[slot][kk], i * 32 * BK * 2))
        for j in range(J):
            p, jj = j // JP, j % JP
            off = p * SB + kk * 16 * PW * 2
            ops.append("ds_read_b64_tr_b16 v[%d:%d], v%d offset:%d" % (fB[buf][j], fB[buf][j] + 1, vRB[slot][jj], off))
            ops.append("ds_read_b64_tr_b16 v[%d:%d], v%d offset:%d" % (fB[buf][j] + 2, fB[buf][j] + 3, vRB[slot][jj], off + 4 * PW * 2))
        if dbg_noread:
            return []
        return ops

    def mfma_ops(buf):
        ops = []
        for i in range(IM):
            for j in range(J):
                ops.append("v_mfma_f32_32x32x16_bf16 v[%d:%d], v[%d:%d], v[%d:%d], v[%d:%d]" % (
                    acc[i][j], acc[i][j] + 15, fB[buf][j], fB[buf][j] + 3, fA[buf][i], fA[buf][i] + 3, acc[i][j], acc[i][j] + 15))
        if dbg_nomfma:
            return ["s_nop 0"]
        if dbg_16:
            ops = []
            for i in range(IM):
                for j in range(J):
                    for hh in range(2):
                        d = acc[i][j] + 4 * hh
                        ops.append("v_mfma_f32_16x16x32_bf16 v[%d:%d], v[%d:%d], v[%d:%d], v[%d:%d]" % (
                            d, d + 3, fB[buf][j], fB[buf][j] + 3, fA[buf][i], fA[buf][i] + 3, d, d + 3))
        return ops

    def interleave(mf, others):
        n = len(mf)
        per = (len(others) + n - 1) // n if others else 0
        k = 0
        for m in mf:
            a(m)
            for o in others[k:k + per]:
                a(o)
            k += per
        for o in others[k:]:
            a(o)

    a("s_waitcnt vmcnt(%d)" % ((NST - 1) * L + npre))
    a("s_barrier")
    for o in read_ops(0, 0, 0):
        a(o)

    def step(it, in_loop):
        slot = it % NST
        for kk in range(NKK):
            buf = kk & 1
            if kk < NKK - 1:
                interleave(mfma_ops(buf), read_ops(slot, kk + 1, buf ^ 1))
            else:
                last = (not in_loop) and it == NS - 1
                if last:
                    interleave(mfma_ops(buf), [])
                else:
                    if in_loop:
                        remain = (NST - 2) * L
                        do_load = True
                    else:
                        remain = (min(it + NST - 1, NS - 1) - (it + 1)) * L
                        do_load = it + NST < NS
                    a("s_waitcnt vmcnt(%d) lgkmcnt(0)" % remain)
                    a("s_barrier")
                    others = read_ops((it + 1) % NST, 0, buf ^ 1)
                    if do_load:
                        others = others + dma_ops(slot)
                    interleave(mfma_ops(buf), others)

    nload = NS - NST
    Lp = (nload // NST) * NST if nload > 0 else 0
    if Lp:
        a("s_mov_b32 s%d, %d" % (sCnt, Lp // NST))
        a.loop_begin("%s_loop" % name)
        for u in range(NST):
            step(u, True)
        a("s_sub_u32 s%d, s%d, 1" % (sCnt, sCnt))
        a("s_cmp_lg_u32 s%d, 0" % sCnt)
        a.loop_end("s_cbranch_scc1 %s_loop" % name)
    for it in range(Lp, NS):
        step(it, False)

    def store_block(src4, i, j):
        for qp in range(2):
            t = src4 + 4 * qp
            a("v_permlane32_swap_b32 v%d, v%d" % (t, t + 2))
            a("v_permlane32_swap_b32 v%d, v%d" % (t + 1, t + 3))
            a("buffer_store_dwordx4 v[%d:%d], v%d, s[%d:%d], s%d offen offset:%d" % (
                t, t + 3, vC, sC, sC + 3, sT[0] if i else sT[1], j * 64 + qp * 32))

    a("s_mov_b32 s%d, 0" % sT[1])
    assert IM <= 2
    a("s_mov_b32 s%d, %d" % (sT[0], 32 * ldc * 2))
    a("s_mov_b32 s%d, %d" % (sT[2], 32 * 2048))
    if epi == "store":
        n = 0
        for i in range(IM):
            for j in range(J):
                e = vE + 8 * (n % 4)
                n += 1
                for d in range(8):
                    a("v_cvt_pk_bf16_f32 v%d, v%d, v%d" % (e + d, acc[i][j] + 2 * d, acc[i][j] + 2 * d + 1))
                store_block(e, i, j)
    elif epi == "resid":
        gbuf = fA[0][0]
        gregs = fA[0][0]
        assert fB[0][0] == fA[1][IM - 1] + 4
        for j in range(J):
            if pre:
                gregs = vGp[j]
            else:
                for q in range(4):
                    a("buffer_load_dwordx4 v[%d:%d], v%d, s[%d:%d], 0 offen offset:%d" % (
                        gregs + 4 * q, gregs + 4 * q + 3, vG, sMod, sMod + 3, j * 128 + q * 32))
            for i in range(IM):
                if pre:
                    xr = vXp[i][j]
                else:
                    xr = vE + 16
                    for q in range(4):
                        a("buffer_load_dwordx2 v[%d:%d], v%d, s[%d:%d], s%d offen offset:%d" % (
                            xr + 2 * q, xr + 2 * q + 1, vX, sX, sX + 3, sT[2] if i else sT[1], j * 64 + q * 16))
                ac = acc[i][j]
                for d in range(8):
                    r0, r1 = ac + 2 * d, ac + 2 * d + 1
                    round_pair(a, r0, r1, r0, r1, vT[0])
                    a("v_mul_f32 v%d, v%d, v%d" % (r0, r0, gregs + 2 * d))
                    a("v_mul_f32 v%d, v%d, v%d" % (r1, r1, gregs + 2 * d + 1))
                    round_pair(a, r0, r1, r0, r1, vT[0])
                    a("v_lshlrev_b32 v%d, 16, v%d" % (vT[1], xr + d))
                    a("v_and_b32 v%d, 0xffff0000, v%d" % (vT[2], xr + d))
                    a("v_add_f32 v%d, v%d, v%d" % (r0, r0, vT[1]))
                    a("v_add_f32 v%d, v%d, v%d" % (r1, r1, vT[2]))
                    a("v_cvt_pk_bf16_f32 v%d, v%d, v%d" % (vE + 8 * (i & 1) + d, r0, r1))
                store_block(vE + 8 * (i & 1), i, j)
    elif epi == "swiglu":
        n = 0
        for i in range(IM):
            for j in range(JP):
                e = vE + 8 * (n % 4)
                n += 1
                g, u = acc[i][j], acc[i][j + JP]
                for d in range(8):
                    g0, g1, u0, u1 = g + 2 * d, g + 2 * d + 1, u + 2 * d, u + 2 * d + 1
                    round_pair(a, g0, g1, g0, g1, vT[0])
                    a("v_mul_f32 v%d, 0xbfb8aa3b, v%d" % (vT[1], g0))
                    a("v_mul_f32 v%d, 0xbfb8aa3b, v%d" % (vT[2], g1))
                    a("v_exp_f32 v%d, v%d" % (vT[1], vT[1]))
                    a("v_exp_f32 v%d, v%d" % (vT[2], vT[2]))
                    round_pair(a, u0, u1, u0, u1, vT[0])
                    a("v_add_f32 v%d, 1.0, v%d" % (vT[1], vT[1]))
                    a("v_add_f32 v%d, 1.0, v%d" % (vT[2], vT[2]))
                    a("v_rcp_f32 v%d, v%d" % (vT[1], vT[1]))
                    a("v_rcp_f32 v%d, v%d" % (vT[2], vT[2]))
                    a("v_mul_f32 v%d, v%d, v%d" % (g0, g0, vT[1]))
                    a("v_mul_f32 v%d, v%d, v%d" % (g1, g1, vT[2]))
                    round_pair(a, g0, g1, g0, g1, vT[0])
                    a("v_mul_f32 v%d, v%d, v%d" % (g0, g0, u0))
                    a("v_mul_f32 v%d, v%d, v%d" % (g1, g1, u1))
                    a("v_cvt_pk_bf16_f32 v%d, v%d, v%d" % (e + d, g0, g1))
                store_block(e, i, j)
    a.label("%s_end" % name)
    a("s_endpgm")
    launch = "; @launch kernel=%s grid=(%d,1,1) block=(%d,1,1) lds=%d" % (name, NWG, NW * 64, LDS)
    return launch, kernel_header(name) + a.finalize() + kernel_footer(name, NV, 64)
```

```python
from common import *
from gemm import lg2


def gen_gemm_ks(name, a_ws, K, bslot, N, BK, NST, out_ws, GM, GN, xm, resid_ws, gate_chunk):
    BM, PW, KS, WM = 128, 64, 4, 2
    NW = 8
    IM, J = 2, 2
    NKK = BK // 16
    NU = NKK // KS
    NS = K // BK
    SA = BM * BK * 2
    SB = BK * PW * 2
    STAGE = SA + SB
    LDS = max(STAGE * NST, 131072)
    assert LDS <= 160 * 1024
    nAw = SA // 1024 // NW
    nBw = SB // 1024 // NW
    assert nAw <= 4 and nBw >= 1
    L = nAw + nBw
    CPR = BK // 8
    RPI = 1024 // (BK * 2)
    RPB = 16 // CPR
    CPRb = PW // 8
    RPIb = 1024 // (PW * 2)
    RB = 2
    gmask = 1
    NWG = GM * GN
    ldc = 1024

    a = Asm()
    nv = [1]

    def alloc(n, al=1):
        nv[0] = (nv[0] + al - 1) // al * al
        r = nv[0]
        nv[0] += n
        return r

    vLane = alloc(1)
    vT = [alloc(1) for _ in range(6)]
    vDA = [alloc(1) for _ in range(nAw)]
    vDB = [alloc(1) for _ in range(nBw)]
    vRA = [[alloc(1) for _ in range(NU)] for _ in range(NST)]
    vRB = [[alloc(1) for _ in range(J)] for _ in range(NST)]
    vC, vX, vG, vW, vR = alloc(1), alloc(1), alloc(1), alloc(1), alloc(1)
    fA = [[alloc(4, 4) for _ in range(IM)] for _ in range(2)]
    fB = [[alloc(4, 4) for _ in range(J)] for _ in range(2)]
    vE = alloc(8, 4)
    vGp = alloc(16, 4)
    vXp = alloc(8, 4)
    vS = [alloc(16, 4) for _ in range(4)]
    acc = [[alloc(16, 4) for _ in range(J)] for _ in range(IM)]
    NV = nv[0]

    sA, sB, sC, sX, sMod = 12, 16, 24, 28, 32
    sM, sN, sW, sKA, sKB, sCnt, sMA, sMB = 36, 37, 38, 39, 40, 41, 42, 43
    sT = [45, 46, 47, 48, 49, 50]
    sG, sSp = 54, 55

    a("s_cmp_ge_u32 s2, %d" % NWG)
    a("s_cbranch_scc1 %s_end" % name)
    load_ptr(a, 4, "ws")
    load_ptr(a, 6, bslot)
    load_ptr(a, 10, "x")
    load_ptr(a, 52, "out")
    a("v_and_b32 v%d, 63, v0" % vLane)
    a("v_lshrrev_b32 v%d, 6, v0" % vT[0])
    a("v_readfirstlane_b32 s%d, v%d" % (sW, vT[0]))
    gmx = GM // xm
    gnx = GN // (8 // xm)
    a("s_and_b32 s%d, s2, 7" % sT[0])
    a("s_lshr_b32 s%d, s2, 3" % sT[1])
    a("s_and_b32 s%d, s%d, %d" % (sT[2], sT[0], xm - 1))
    a("s_lshr_b32 s%d, s%d, %d" % (sT[3], sT[0], lg2(xm)))
    a("s_and_b32 s%d, s%d, %d" % (sT[4], sT[1], gmx - 1))
    a("s_lshr_b32 s%d, s%d, %d" % (sT[5], sT[1], lg2(gmx)))
    a("s_mul_i32 s%d, s%d, %d" % (sT[2], sT[2], gmx))
    a("s_add_u32 s%d, s%d, s%d" % (sM, sT[2], sT[4]))
    a("s_mul_i32 s%d, s%d, %d" % (sT[3], sT[3], gnx))
    a("s_add_u32 s%d, s%d, s%d" % (sN, sT[3], sT[5]))
    a("s_mul_i32 s%d, s%d, %d" % (sM, sM, BM))
    a("s_mul_i32 s%d, s%d, %d" % (sN, sN, PW))
    a("s_and_b32 s%d, s%d, 3" % (sG, sW))
    a("s_lshr_b32 s%d, s%d, 2" % (sSp, sW))
    a("s_waitcnt lgkmcnt(0)")
    make_srd(a, sA, 4, 2048 * K * 2, a_ws)
    make_srd(a, sB, 6, K * N * 2)
    if out_ws is None:
        make_srd(a, sC, 52, 2048 * ldc * 2)
    else:
        make_srd(a, sC, 4, 2048 * ldc * 2, out_ws)
    if resid_ws is None:
        make_srd(a, sX, 10, SZ_ACT)
    else:
        make_srd(a, sX, 4, SZ_ACT, resid_ws)
    make_srd(a, sMod, 4, SZ_MOD, WS_MOD)
    a("s_mul_i32 s%d, s%d, %d" % (sT[0], sW, nAw * RPI))
    a("s_mov_b32 s%d, %d" % (sT[1], K * 2))
    a("v_lshrrev_b32 v%d, %d, v%d" % (vT[0], lg2(CPR), vLane))
    a("v_add_u32 v%d, s%d, v%d" % (vT[0], sT[0], vT[0]))
    a("v_and_b32 v%d, %d, v%d" % (vT[1], CPR - 1, vLane))
    for t in range(nAw):
        a("v_add_u32 v%d, %d, v%d" % (vT[2], t * RPI, vT[0]))
        a("v_bfe_u32 v%d, v%d, %d, %d" % (vT[3], vT[2], lg2(RPB), lg2(CPR)))
        a("v_xor_b32 v%d, v%d, v%d" % (vT[3], vT[3], vT[1]))
        a("v_add_u32 v%d, s%d, v%d" % (vT[2], sM, vT[2]))
        a("v_mul_lo_u32 v%d, v%d, s%d" % (vT[2], vT[2], sT[1]))
        a("v_lshl_add_u32 v%d, v%d, 4, v%d" % (vDA[t], vT[3], vT[2]))
        if t:
            a("v_subrev_u32 v%d, %d, v%d" % (vDA[t], t * 1024, vDA[t]))
    a("s_mul_i32 s%d, s%d, %d" % (sT[0], sW, nBw * RPIb))
    a("s_mov_b32 s%d, %d" % (sT[1], N * 2))
    a("s_lshl_b32 s%d, s%d, 1" % (sT[2], sN))
    a("v_lshrrev_b32 v%d, %d, v%d" % (vT[0], lg2(CPRb), vLane))
    a("v_add_u32 v%d, s%d, v%d" % (vT[0], sT[0], vT[0]))
    a("v_and_b32 v%d, %d, v%d" % (vT[1], CPRb - 1, vLane))
    for t in range(nBw):
        a("v_add_u32 v%d, %d, v%d" % (vT[2], t * RPIb, vT[0]))
        a("v_lshrrev_b32 v%d, %d, v%d" % (vT[3], lg2(RB), vT[2]))
        a("v_and_b32 v%d, %d, v%d" % (vT[3], gmask, vT[3]))
        a("v_lshlrev_b32 v%d, 2, v%d" % (vT[3], vT[3]))
        a("v_xor_b32 v%d, v%d, v%d" % (vT[3], vT[3], vT[1]))
        a("v_mul_lo_u32 v%d, v%d, s%d" % (vT[2], vT[2], sT[1]))
        a("v_lshl_add_u32 v%d, v%d, 4, v%d" % (vDB[t], vT[3], vT[2]))
        a("v_add_u32 v%d, s%d, v%d" % (vDB[t], sT[2], vDB[t]))
        if t:
            a("v_subrev_u32 v%d, %d, v%d" % (vDB[t], t * 1024, vDB[t]))
    a("s_mul_i32 s%d, s%d, %d" % (sMA, sW, nAw * 1024))
    a("s_mul_i32 s%d, s%d, %d" % (sMB, sW, nBw * 1024))
    a("s_add_u32 s%d, s%d, %d" % (sMB, sMB, SA))
    a("s_mov_b32 s%d, 0" % sKA)
    a("s_mov_b32 s%d, 0" % sKB)

    def dma_ops(slot):
        ops = ["s_add_u32 m0, s%d, %d" % (sMA, slot * STAGE)]
        for t in range(nAw):
            ops.append("buffer_load_dwordx4 v%d, s[%d:%d], s%d offen offset:%d lds" % (vDA[t], sA, sA + 3, sKA, t * 1024))
        ops.append("s_add_u32 m0, s%d, %d" % (sMB, slot * STAGE))
        for t in range(nBw):
            ops.append("buffer_load_dwordx4 v%d, s[%d:%d], s%d offen offset:%d lds" % (vDB[t], sB, sB + 3, sKB, t * 1024))
        ops.append("s_add_u32 s%d, s%d, %d" % (sKA, sKA, BK * 2))
        ops.append("s_add_u32 s%d, s%d, %d" % (sKB, sKB, BK * N * 2))
        return ops

    for st in range(NST):
        for o in dma_ops(st):
            a(o)

    a("s_lshl_b32 s%d, s%d, 6" % (sT[2], sSp))
    a("v_and_b32 v%d, 31, v%d" % (vT[0], vLane))
    a("v_add_u32 v%d, s%d, v%d" % (vT[4], sT[2], vT[0]))
    a("v_lshrrev_b32 v%d, 5, v%d" % (vT[1], vLane))
    a("v_bfe_u32 v%d, v%d, %d, %d" % (vT[2], vT[4], lg2(RPB), lg2(CPR)))
    a("v_xor_b32 v%d, v%d, v%d" % (vT[2], vT[2], vT[1]))
    a("v_lshlrev_b32 v%d, 4, v%d" % (vT[2], vT[2]))
    a("v_lshl_add_u32 v%d, v%d, %d, v%d" % (vT[2], vT[4], lg2(BK * 2), vT[2]))
    a("s_lshl_b32 s%d, s%d, 5" % (sT[3], sG))
    a("v_xor_b32 v%d, s%d, v%d" % (vT[2], sT[3], vT[2]))
    for u in range(NU):
        a("v_xor_b32 v%d, %d, v%d" % (vRA[0][u], (4 * u) << 5, vT[2]))
        for st in range(1, NST):
            a("v_add_u32 v%d, %d, v%d" % (vRA[st][u], st * STAGE, vRA[0][u]))
    a("s_lshr_b32 s%d, s%d, 1" % (sT[3], sG))
    a("s_lshl_b32 s%d, s%d, 5" % (sT[3], sT[3]))
    a("s_add_u32 s%d, s%d, s%d" % (sT[3], sT[3], sT[2]))
    a("s_add_u32 s%d, s%d, s%d" % (sT[3], sT[3], sM))
    a("s_and_b32 s%d, s%d, 1" % (sT[4], sG))
    a("s_lshl_b32 s%d, s%d, 5" % (sT[4], sT[4]))
    a("s_add_u32 s%d, s%d, s%d" % (sT[4], sT[4], sN))
    a("v_add_u32 v%d, s%d, v%d" % (vT[0], sT[3], vT[0]))
    a("s_lshl_b32 s%d, s%d, 1" % (sT[5], sT[4]))
    a("v_lshlrev_b32 v%d, 11, v%d" % (vX, vT[0]))
    a("v_add_u32 v%d, s%d, v%d" % (vX, sT[5], vX))
    a("v_lshl_add_u32 v%d, v%d, 4, v%d" % (vC, vT[1], vX))
    a("v_lshl_add_u32 v%d, v%d, 3, v%d" % (vX, vT[1], vX))
    a("s_lshl_b32 s%d, s%d, 2" % (sT[5], sT[4]))
    a("s_add_u32 s%d, s%d, %d" % (sT[5], sT[5], gate_chunk * 4096))
    a("v_lshlrev_b32 v%d, 4, v%d" % (vG, vT[1]))
    a("v_add_u32 v%d, s%d, v%d" % (vG, sT[5], vG))
    npre = 0
    for q in range(4):
        a("buffer_load_dwordx4 v[%d:%d], v%d, s[%d:%d], 0 offen offset:%d" % (vGp + 4 * q, vGp + 4 * q + 3, vG, sMod, sMod + 3, q * 32))
        a("buffer_load_dwordx2 v[%d:%d], v%d, s[%d:%d], 0 offen offset:%d" % (vXp + 2 * q, vXp + 2 * q + 1, vX, sX, sX + 3, q * 16))
        npre += 2
    a("s_lshl_b32 s%d, s%d, 14" % (sT[3], sW))
    a("v_lshlrev_b32 v%d, 4, v%d" % (vW, vLane))
    a("s_lshl_b32 s%d, s%d, 16" % (sT[4], sSp))
    a("s_lshl_b32 s%d, s%d, 12" % (sT[5], sG))
    a("s_add_u32 s%d, s%d, s%d" % (sT[4], sT[4], sT[5]))
    a("v_add_u32 v%d, s%d, v%d" % (vR, sT[4], vW))
    a("v_add_u32 v%d, s%d, v%d" % (vW, sT[3], vW))
    a("v_bfe_u32 v%d, v%d, 2, 2" % (vT[0], vLane))
    a("v_and_b32 v%d, 3, v%d" % (vT[1], vLane))
    a("v_bfe_u32 v%d, v%d, 4, 1" % (vT[2], vLane))
    a("v_lshrrev_b32 v%d, 5, v%d" % (vT[3], vLane))
    a("v_lshl_add_u32 v%d, v%d, 3, v%d" % (vT[3], vT[3], vT[0]))
    a("s_lshl_b32 s%d, s%d, 4" % (sT[3], sG))
    a("v_add_u32 v%d, s%d, v%d" % (vT[3], sT[3], vT[3]))
    a("v_lshlrev_b32 v%d, %d, v%d" % (vT[3], lg2(PW * 2), vT[3]))
    a("v_and_b32 v%d, 1, v%d" % (vT[4], vT[1]))
    a("v_lshl_add_u32 v%d, v%d, 3, v%d" % (vT[3], vT[4], vT[3]))
    a("v_add_u32 v%d, %d, v%d" % (vT[3], SA, vT[3]))
    a("v_lshrrev_b32 v%d, 1, v%d" % (vT[1], vT[1]))
    a("v_lshl_add_u32 v%d, v%d, 1, v%d" % (vT[1], vT[2], vT[1]))
    a("v_lshrrev_b32 v%d, %d, v%d" % (vT[0], lg2(RB), vT[0]))
    a("v_and_b32 v%d, %d, v%d" % (vT[0], gmask, vT[0]))
    a("v_lshlrev_b32 v%d, 2, v%d" % (vT[0], vT[0]))
    for j in range(J):
        a("v_add_u32 v%d, %d, v%d" % (vT[2], j * 4, vT[1]))
        a("v_xor_b32 v%d, v%d, v%d" % (vT[2], vT[2], vT[0]))
        a("v_lshl_add_u32 v%d, v%d, 4, v%d" % (vRB[0][j], vT[2], vT[3]))
        for st in range(1, NST):
            a("v_add_u32 v%d, %d, v%d" % (vRB[st][j], st * STAGE, vRB[0][j]))
    for i in range(IM):
        for j in range(J):
            for r in range(16):
                a("v_mov_b32 v%d, 0" % (acc[i][j] + r))

    def read_ops(slot, u, buf):
        ops = []
        for i in range(IM):
            ops.append("ds_read_b128 v[%d:%d], v%d offset:%d" % (fA[buf][i], fA[buf][i] + 3, vRA[slot][u], i * 32 * BK * 2))
        for j in range(J):
            off = u * 64 * PW * 2
            ops.append("ds_read_b64_tr_b16 v[%d:%d], v%d offset:%d" % (fB[buf][j], fB[buf][j] + 1, vRB[slot][j], off))
            ops.append("ds_read_b64_tr_b16 v[%d:%d], v%d offset:%d" % (fB[buf][j] + 2, fB[buf][j] + 3, vRB[slot][j], off + 4 * PW * 2))
        return ops

    def mfma_ops(buf):
        return ["v_mfma_f32_32x32x16_bf16 v[%d:%d], v[%d:%d], v[%d:%d], v[%d:%d]" % (
            acc[i][j], acc[i][j] + 15, fB[buf][j], fB[buf][j] + 3, fA[buf][i], fA[buf][i] + 3, acc[i][j], acc[i][j] + 15)
            for i in range(IM) for j in range(J)]

    def interleave(mf, others):
        n = len(mf)
        per = (len(others) + n - 1) // n if others else 0
        k = 0
        for m in mf:
            a(m)
            for o in others[k:k + per]:
                a(o)
            k += per
        for o in others[k:]:
            a(o)

    a("s_waitcnt vmcnt(%d)" % ((NST - 1) * L + npre))
    a("s_barrier")
    for o in read_ops(0, 0, 0):
        a(o)
    par = [0]

    def step(it, in_loop):
        slot = it % NST
        for u in range(NU):
            buf = par[0]
            par[0] ^= 1
            if u < NU - 1:
                interleave(mfma_ops(buf), read_ops(slot, u + 1, buf ^ 1))
            elif (not in_loop) and it == NS - 1:
                interleave(mfma_ops(buf), [])
            else:
                if in_loop:
                    remain, do_load = (NST - 2) * L, True
                else:
                    remain = (min(it + NST - 1, NS - 1) - (it + 1)) * L
                    do_load = it + NST < NS
                a("s_waitcnt vmcnt(%d) lgkmcnt(0)" % remain)
                a("s_barrier")
                others = read_ops((it + 1) % NST, 0, buf ^ 1)
                if do_load:
                    others = others + dma_ops(slot)
                interleave(mfma_ops(buf), others)

    UN = NST if (NST * NU) % 2 == 0 else 2 * NST
    nload = NS - NST
    Lp = (nload // UN) * UN
    if Lp:
        a("s_mov_b32 s%d, %d" % (sCnt, Lp // UN))
        a.loop_begin("%s_loop" % name)
        for u in range(UN):
            step(u, True)
        a("s_sub_u32 s%d, s%d, 1" % (sCnt, sCnt))
        a("s_cmp_lg_u32 s%d, 0" % sCnt)
        a.loop_end("s_cbranch_scc1 %s_loop" % name)
    for it in range(Lp, NS):
        step(it, False)

    a("s_waitcnt lgkmcnt(0)")
    a("s_barrier")
    for i in range(IM):
        for j in range(J):
            for q in range(4):
                r = acc[i][j] + 4 * q
                a("ds_write_b128 v%d, v[%d:%d] offset:%d" % (vW, r, r + 3, (i * 2 + j) * 4096 + q * 1024))
    a("s_waitcnt lgkmcnt(0)")
    a("s_barrier")
    for g in range(4):
        for q in range(4):
            a("ds_read_b128 v[%d:%d], v%d offset:%d" % (vS[g] + 4 * q, vS[g] + 4 * q + 3, vR, g * 16384 + q * 1024))
    for r in range(16):
        a("v_add_f32 v%d, v%d, v%d" % (vS[0] + r, vS[0] + r, vS[1] + r))
        a("v_add_f32 v%d, v%d, v%d" % (vS[2] + r, vS[2] + r, vS[3] + r))
    for r in range(16):
        a("v_add_f32 v%d, v%d, v%d" % (vS[0] + r, vS[0] + r, vS[2] + r))
    ac = vS[0]
    for d in range(8):
        r0, r1 = ac + 2 * d, ac + 2 * d + 1
        round_pair(a, r0, r1, r0, r1, vT[0])
        a("v_mul_f32 v%d, v%d, v%d" % (r0, r0, vGp + 2 * d))
        a("v_mul_f32 v%d, v%d, v%d" % (r1, r1, vGp + 2 * d + 1))
        round_pair(a, r0, r1, r0, r1, vT[0])
        a("v_lshlrev_b32 v%d, 16, v%d" % (vT[1], vXp + d))
        a("v_and_b32 v%d, 0xffff0000, v%d" % (vT[2], vXp + d))
        a("v_add_f32 v%d, v%d, v%d" % (r0, r0, vT[1]))
        a("v_add_f32 v%d, v%d, v%d" % (r1, r1, vT[2]))
        a("v_cvt_pk_bf16_f32 v%d, v%d, v%d" % (vE + d, r0, r1))
    for qp in range(2):
        t = vE + 4 * qp
        a("v_permlane32_swap_b32 v%d, v%d" % (t, t + 2))
        a("v_permlane32_swap_b32 v%d, v%d" % (t + 1, t + 3))
        a("buffer_store_dwordx4 v[%d:%d], v%d, s[%d:%d], 0 offen offset:%d" % (t, t + 3, vC, sC, sC + 3, qp * 32))
    a.label("%s_end" % name)
    a("s_endpgm")
    launch = "; @launch kernel=%s grid=(%d,1,1) block=(512,1,1) lds=%d" % (name, NWG, LDS)
    return launch, kernel_header(name) + a.finalize() + kernel_footer(name, NV, 64)
```

```python
import sys, copy
from common import *
from small import gen_mod, gen_ln
from gemm import gen_gemm
from attn import gen_attn
from gemm_ks import gen_gemm_ks

HEAD = """; adaLN-conditioned GQA attention block + SwiGLU FFN, gfx950.  Generated by gen/gen.py (hand-written generator).
"""

DEF = dict(
    q=dict(BM=256, PW=128, BK=64, NST=3, WM=4, WN=2, xm=2),
    o=dict(BM=128, PW=64, BK=64, NST=4, WM=4, WN=2, xm=2),
    gu=dict(BM=256, PW=128, BK=64, NST=2, WM=4, WN=2, xm=2),
    d=dict(BM=128, PW=64, BK=64, NST=4, WM=4, WN=2, xm=2),
    attn=dict(),
)

def build(cfg=None):
    c = copy.deepcopy(DEF)
    for k, v in (cfg or {}).items():
        c[k].update(v)
    launches = []
    bodies = []
    launches.append("; @launch kernel=mod_kernel grid=(192,1,1) block=(512,1,1) lds=1024")
    bodies.append(gen_mod("mod_kernel"))
    launches.append("; @launch kernel=ln1_kernel grid=(512,1,1) block=(256,1,1) lds=0")
    bodies.append(gen_ln("ln1_kernel", None, WS_H1, 0, 1))
    def G(name, p, a_ws, K, bs, N, epi, out_ws, ldc, **kw):
        extra = {k: v for k, v in p.items() if k not in ("BM", "PW", "BK", "NST", "WM", "WN", "xm", "Kov", "GNov")}
        if "Kov" in p:
            extra["lda"] = K
        l, b = gen_gemm(name, a_ws, p.get("Kov", K), bs, N, p["BM"], p["PW"], p["BK"], p["NST"], p["WM"], p["WN"], epi, out_ws, ldc,
                        2048 // p["BM"], p.get("GNov", N // p["PW"]), p["xm"], **kw, **extra)
        launches.append(l); bodies.append(b)
    if not c["attn"].get("fuse_q", True):
        G("qproj_kernel", c["q"], WS_H1, 1024, ["wq"], 4096, "store", WS_Q, 4096)
    l, b = gen_attn("attn_kernel", **c["attn"])
    launches.append(l); bodies.append(b)
    if "ks" in c["o"]:
        l, b = gen_gemm_ks("oproj_kernel", WS_O, 4096, "wo", 1024, c["o"]["ks"][0], c["o"]["ks"][1], WS_X1, 16, 16, 2, None, 2)
        launches.append(l); bodies.append(b)
    else:
        G("oproj_kernel", c["o"], WS_O, 4096, ["wo"], 1024, "resid", WS_X1, 1024, resid_ws=None, gate_chunk=2)
    launches.append("; @launch kernel=ln2_kernel grid=(512,1,1) block=(256,1,1) lds=0")
    bodies.append(gen_ln("ln2_kernel", WS_X1, WS_H2, 3, 4))
    G("gateup_kernel", c["gu"], WS_H2, 1024, ["wg", "wu"], 3584, "swiglu", WS_GU, 3584)
    if "ks" in c["d"]:
        l, b = gen_gemm_ks("down_kernel", WS_GU, 3584, "wd", 1024, c["d"]["ks"][0], c["d"]["ks"][1], None, 16, 16, 2, WS_X1, 5)
        launches.append(l); bodies.append(b)
    else:
        G("down_kernel", c["d"], WS_GU, 3584, ["wd"], 1024, "resid", None, 1024, resid_ws=WS_X1, gate_chunk=5)
    return HEAD + "\n".join(launches) + '\n.amdgcn_target "amdgcn-amd-amdhsa--gfx950"\n' + "\n".join(bodies)

if __name__ == "__main__":
    out = sys.argv[1] if len(sys.argv) > 1 else "adaLN_cond__gqa_block_cached__swiglu_ffn__prompt.s"
    open(out, "w").write(build())
    print("wrote", out)
```
